```python
import torch

def _softmax(x, axis=-1):
    return torch.softmax(x, dim=axis)

def _gelu(x):
    return torch.nn.functional.gelu(x, approximate='tanh')

def _silu(x):
    return torch.nn.functional.silu(x)

def _sigmoid(x):
    return torch.sigmoid(x)

def _layernorm(x, axis=-1, eps=1e-05):
    m = x.mean(dim=axis, keepdim=True)
    v = x.var(dim=axis, keepdim=True, unbiased=False)
    return (x - m) / torch.sqrt(v + eps)

def _scatter_add(tgt, idx, src, axis=0):
    return tgt.clone().index_add_(axis, idx, src)

def _segment_sum(src, seg, n):
    out = torch.zeros((n,) + src.shape[1:], dtype=src.dtype)
    return out.index_add_(0, seg, src)

def _pad(x, pw):
    flat = tuple((v for pair in reversed(pw) for v in pair))
    return torch.nn.functional.pad(x, flat)
kernel_name = 'adaLN_cond__ssm_conv_s4d__glu_gated_glu__prompt'

def setup_inputs():

    _w = lambda a: (lambda t: t.to(torch.bfloat16) if t.is_floating_point() else t)(torch.as_tensor(a))

    def _A_setup():
        Bsz, L, D, N = (1, 2048, 512, 128)
        return {'u': _w((lambda *s: torch.randn(*s, dtype=torch.bfloat16) * 0.05)(Bsz, L, D)), 'log_A_real': _w((lambda *s: torch.randn(*s, dtype=torch.bfloat16) * 3.2)(D, N) * 0.5), 'A_imag': _w((lambda *s: torch.randn(*s, dtype=torch.bfloat16) * 0.1)(D, N) * 3.14), 'C_real': _w((lambda *s: torch.randn(*s, dtype=torch.bfloat16) * 0.8)(D, N) / N ** 0.5), 'C_imag': _w((lambda *s: torch.randn(*s, dtype=torch.bfloat16) * 0.8)(D, N) / N ** 0.5), 'log_dt': _w((lambda *s: torch.randn(*s, dtype=torch.bfloat16) * 0.1)(D) * 0.5 - 4.0), 'D_skip': _w((lambda *s: torch.randn(*s, dtype=torch.bfloat16) * 0.1)(D))}
    _A_in = _A_setup()

    def _B_setup():
        B, S, D, F = (1, 2048, 512, 1376)
        return {'x': _w((lambda *s: torch.randn(*s, dtype=torch.bfloat16) * 0.05)(B, S, D)), 'w_gate': _w((lambda *s: torch.randn(*s, dtype=torch.bfloat16) * 0.1)(D, F)), 'w_up': _w((lambda *s: torch.randn(*s, dtype=torch.bfloat16) * 0.05)(D, F)), 'w_down': _w((lambda *s: torch.randn(*s, dtype=torch.bfloat16) * 0.05)(F, D))}
    _B_in = _B_setup()
    return {'A_u': _A_in['u'], 'A_log_A_real': _A_in['log_A_real'], 'A_A_imag': _A_in['A_imag'], 'A_C_real': _A_in['C_real'], 'A_C_imag': _A_in['C_imag'], 'A_log_dt': _A_in['log_dt'], 'A_D_skip': _A_in['D_skip'], 'B_x': _B_in['x'], 'B_w_gate': _B_in['w_gate'], 'B_w_up': _B_in['w_up'], 'B_w_down': _B_in['w_down'], 'c': _w((lambda *s: torch.randn(*s, dtype=torch.bfloat16) * 0.4)(1, 512) * 8.0), 'w_mod': _w((lambda *s: torch.randn(*s, dtype=torch.bfloat16) * 0.4)(512, 6 * 512) * 512 ** (-0.5) * 8.0)}

def reference(A_u, A_log_A_real, A_A_imag, A_C_real, A_C_imag, A_log_dt, A_D_skip, B_x, B_w_gate, B_w_up, B_w_down, c, w_mod):

    def _A_ref(u, log_A_real, A_imag, C_real, C_imag, log_dt, D_skip):
        L = u.shape[1]
        dt = torch.exp(log_dt)
        A = -torch.exp(log_A_real) + 1j * A_imag
        C = (C_real + 1j * C_imag) * dt[:, None]
        pos = (lambda x, dt: x.to(dt))(torch.arange(L), log_dt.dtype)
        P = torch.exp((A * dt[:, None])[:, :, None] * pos[None, None, :])
        K = 2.0 * torch.einsum('dn,dnl->dl', C, P).real
        L2 = 2 * L
        u_t = (lambda x, *d: x.permute(*d))(u, 0, 2, 1)
        Kf = (lambda x, *a, **k: torch.fft.rfft(x.float(), *a, **k))(K, L2)
        Uf = (lambda x, *a, **k: torch.fft.rfft(x.float(), *a, **k))(u_t, L2)
        y = (lambda x, *a, **k: torch.fft.irfft(x, *a, **k).to(torch.bfloat16))(Uf * Kf[None, :, :], L2)[:, :, :L]
        y = (lambda x, *d: x.permute(*d))(y, 0, 2, 1)
        return y + u * D_skip[None, None, :]

    def _B_ref(x, w_gate, w_up, w_down):
        g = torch.einsum('bsd,df->bsf', x, w_gate)
        u = torch.einsum('bsd,df->bsf', x, w_up)
        h = _sigmoid(g) * u
        return torch.einsum('bsf,fd->bsd', h, w_down)
    x = A_u
    mod = (_silu(c) @ w_mod).reshape(c.shape[0], 6, 1, -1)
    sa, ca, ga, sb, cb, gb = (mod[:, 0].clone(), mod[:, 1].clone(), mod[:, 2].clone(), mod[:, 3].clone(), mod[:, 4].clone(), mod[:, 5].clone())
    h = _layernorm(x, axis=-1) * (1 + ca) + sa
    x = x + ga * _A_ref(h, A_log_A_real, A_A_imag, A_C_real, A_C_imag, A_log_dt, A_D_skip)
    h = _layernorm(x, axis=-1) * (1 + cb) + sb
    x = x + gb * _B_ref(h, B_w_gate, B_w_up, B_w_down)
    return x
```

```python
import re

TRANS = ('v_exp_f32', 'v_log_f32', 'v_rcp_f32', 'v_rsq_f32', 'v_sqrt_f32', 'v_sin_f32', 'v_cos_f32',
         'v_rcp_iflag_f32')
REG_RE = re.compile(r'^(-|abs\(|\|)?\s*([vas])(\d+|\[(\d+):(\d+)\])\)?\|?$')


def regs_of(op):
    op = op.strip()
    if op in ('vcc', 'vcc_lo', 'vcc_hi'):
        return {('s', 'vcc')}
    if op in ('exec', 'exec_lo', 'exec_hi'):
        return {('s', 'exec')}
    if op == 'm0':
        return {('s', 'm0')}
    m = REG_RE.match(op)
    if not m:
        return set()
    k = m.group(2)
    if m.group(4) is not None:
        return {(k, i) for i in range(int(m.group(4)), int(m.group(5)) + 1)}
    return {(k, int(m.group(3)))}


def split_ops(s):
    out, depth, cur = [], 0, ''
    for ch in s:
        if ch in '[(':
            depth += 1
        if ch in '])':
            depth -= 1
        if ch == ',' and depth == 0:
            out.append(cur.strip())
            cur = ''
        else:
            cur += ch
    if cur.strip():
        out.append(cur.strip())
    return out


def isvec(r):
    return r[0] in 'va'


class Ins:
    def __init__(self, text):
        self.text = text
        t = text.split(';')[0].strip()
        parts = t.split(None, 1)
        self.mn = mn = parts[0]
        rest = parts[1] if len(parts) > 1 else ''
        ops = split_ops(rest)
        mods = ''
        if ops:
            last = ops[-1].split(None, 1)
            ops[-1] = last[0]
            mods = last[1] if len(last) > 1 else ''
        self.ops, self.mods = ops, mods
        R = [regs_of(o) for o in ops]
        self.w, self.r = set(), set()
        self.kind = 'other'
        self.states = 1
        self.A = self.B = self.C = set()
        self.store_data = set()
        self.passes = 0
        base = re.sub(r'_(e32|e64|dpp|sdwa)$', '', mn)
        self.base = base
        if mn == 's_nop':
            self.states = int(ops[0], 0) + 1
        elif mn.startswith('v_mfma'):
            self.kind = 'mfma'
            self.w = R[0]
            self.A, self.B, self.C = R[1], R[2], R[3]
            self.r = R[1] | R[2] | R[3]
            self.passes = 4 if '16x16x32' in mn else 8 if '32x32x16' in mn else None
            assert self.passes, mn
        elif mn.startswith('v_'):
            self.kind = 'valu'
            self.w = set(R[0])
            srcs = R[1:]
            if base in ('v_add_co_u32', 'v_sub_co_u32', 'v_addc_co_u32', 'v_subb_co_u32'):
                self.w |= R[1]
                srcs = R[2:]
            for s in srcs:
                self.r |= s
            if 'permlane' in mn and 'swap' in mn:
                self.w |= R[1]
                self.r |= R[0]
            if base.startswith(('v_fmac', 'v_dot2c', 'v_mac', 'v_writelane')) or 'dpp' in mn or (
                    'sdwa' in mn and 'UNUSED_PRESERVE' in mods):
                self.r |= R[0]
            if base.startswith('v_cmpx'):
                self.w |= {('s', 'exec')}
        elif mn.startswith('ds_'):
            self.kind = 'ds'
            if mn.startswith(('ds_read', 'ds_bpermute', 'ds_permute', 'ds_swizzle')) or '_rtn' in mn:
                self.w = R[0]
                for s in R[1:]:
                    self.r |= s
            else:
                for s in R:
                    self.r |= s
        elif mn.startswith(('buffer_', 'global_')):
            self.kind = 'vmem'
            lds = (' lds' in (' ' + mods)) or '_lds_' in mn
            self.lds = lds
            if mn in ('buffer_wbl2', 'buffer_inv'):
                pass
            elif lds:
                for s in R:
                    self.r |= s
                self.r |= {('s', 'm0')}
            elif '_load' in mn:
                self.w = R[0]
                for s in R[1:]:
                    self.r |= s
                if 'd16' in mn:
                    self.r |= R[0]
            else:
                for s in R:
                    self.r |= s
                data = R[0] if mn.startswith('buffer_') else R[1]
                if 'atomic' in mn and 'sc0' in mods:
                    self.w = R[0]
                if mn.endswith(('x3', 'x4')):
                    self.store_data = data
        elif mn.startswith('s_'):
            self.kind = 'salu'
            if mn.startswith(('s_cmp', 's_bitcmp', 's_cbranch', 's_branch', 's_waitcnt', 's_barrier', 's_endpgm', 's_sleep',
                              's_setprio', 's_setpc')):
                for s in R:
                    self.r |= s
            else:
                if R:
                    self.w = R[0]
                for s in R[1:]:
                    self.r |= s
                if 'saveexec' in mn:
                    self.w = self.w | {('s', 'exec')}
        else:
            raise ValueError('unknown instr ' + text)
        if mn.startswith('v_pk_') and mn.endswith('_f32'):
            assert 'op_sel:[0,1' not in mods, text
        self.trans = base in TRANS
        self.dl = base.startswith('v_dot')
        self.dpp = 'dpp' in mn
        self.perml = 'permlane' in mn
        self.rdlane = base in ('v_readlane_b32', 'v_readfirstlane_b32')
        self.movespos = ('sdwa' in mn and 'dst_sel:DWORD' not in mods)


def need(p, c):
    n = 0
    pv = {r for r in p.w if isvec(r)}
    ps = {r for r in p.w if not isvec(r)}
    if p.kind == 'valu':
        if c.kind == 'mfma' and pv & c.r:
            n = max(n, 3 if p.dl else 2)
        if c.kind == 'valu':
            if p.trans and not c.trans and pv & c.r:
                n = max(n, 1)
            if (c.perml or c.dpp) and pv & c.r:
                n = max(n, 2)
            if c.rdlane and pv & c.r:
                n = max(n, 1)
            if ps & c.r:
                n = max(n, 4 if c.base in ('v_readlane_b32', 'v_writelane_b32', 'v_div_fmas_f32') else 2)
            if p.movespos and pv & (c.r | c.w):
                n = max(n, 1)
            if ('s', 'exec') in ps:
                n = max(n, 5 if c.dpp else 4 if (c.perml or c.rdlane) else 0)
        if p.dl and pv & (c.r | c.w) and c.kind in ('valu', 'ds', 'vmem'):
            same = c.kind == 'valu' and c.base == p.base
            if same:
                if c.base.startswith('v_dot2c'):
                    ab = regs_of(c.ops[1]) | regs_of(c.ops[2])
                else:
                    ab = regs_of(c.ops[1]) | regs_of(c.ops[2])
                if pv & ab:
                    n = max(n, 3)
            else:
                n = max(n, 3)
        if c.kind == 'vmem' and ps & c.r:
            n = max(n, 5)
        if c.kind == 'mfma' and ('s', 'exec') in ps:
            n = max(n, 4)
    if p.kind == 'mfma':
        big = {4: 8, 8: 12}[p.passes]
        if c.kind == 'mfma':
            if pv & (c.A | c.B):
                n = max(n, big)
            if pv & c.C and not (pv == c.C and p.passes == c.passes):
                n = max(n, {4: 6, 8: 10}[p.passes])
            if pv & c.w and not (pv == c.C and p.passes == c.passes):
                n = max(n, {4: 6, 8: 10}[p.passes])
        elif c.kind in ('valu', 'ds', 'vmem'):
            if pv & (c.r | c.w):
                n = max(n, big)
            if c.kind == 'valu' and p.C & c.w:
                n = max(n, {4: 3, 8: 7}[p.passes])
    if p.kind == 'vmem' and p.store_data & c.w:
        n = max(n, 2)
    if p.kind == 'salu' and ('s', 'm0') in ps and c.kind == 'vmem' and getattr(c, 'lds', False):
        n = max(n, 1)
    return n


class Asm:
    HIST = 24

    def __init__(self):
        self.lines = []
        self.hists = [[]]
        self.pending = {}
        self.defined = {}
        self.seq = []
        self.nops = 0
        self.st = {'vm': {}, 'lg': {}, 'sm': set()}
        self.pend_st = {}
        self.label_st = {}

    def _copy_st(self, st):
        return {'vm': dict(st['vm']), 'lg': dict(st['lg']), 'sm': set(st['sm'])}

    def _merge_st(self, a, b):
        if a is None:
            return self._copy_st(b)
        for k in ('vm', 'lg'):
            for r, n in b[k].items():
                a[k][r] = min(a[k].get(r, n), n)
        a['sm'] |= b['sm']
        return a

    def _apply_wait(self, text):
        m = re.search(r'vmcnt\((\d+)\)', text)
        if m:
            n = int(m.group(1))
            self.st['vm'] = {r: c for r, c in self.st['vm'].items() if c < n}
        m = re.search(r'lgkmcnt\((\d+)\)', text)
        if m:
            n = int(m.group(1))
            if n == 0:
                self.st['lg'] = {}
                self.st['sm'] = set()
            elif not self.st['sm']:
                self.st['lg'] = {r: c for r, c in self.st['lg'].items() if c < n}

    def wait_for(self, regs):
        vm = [c for r, c in self.st['vm'].items() if r in regs]
        lg = [c for r, c in self.st['lg'].items() if r in regs]
        parts = []
        if vm:
            parts.append('vmcnt(%d)' % min(min(vm), 63))
        if regs & self.st['sm'] or (lg and self.st['sm']):
            parts.append('lgkmcnt(0)')
        elif lg:
            parts.append('lgkmcnt(%d)' % min(min(lg), 15))
        if parts:
            t = 's_waitcnt ' + ' '.join(parts)
            self._push(Ins(t))
            self._apply_wait(t)
            for k in ('vm', 'lg'):
                self.st[k] = {r: c for r, c in self.st[k].items() if r not in regs}

    def wait_tag(self, *tags):
        self.wait_for({('t', t) for t in tags})

    def _track(self, ins, tag):
        dst = set(ins.w)
        if tag is not None:
            dst.add(('t', tag))
        if ins.kind == 'vmem':
            k = 'vm'
        elif ins.kind == 'ds':
            k = 'lg'
        elif ins.mn.startswith(('s_load', 's_buffer_load', 's_memtime', 's_memrealtime', 's_atomic')):
            self.st['sm'] |= dst | {('t', '_smem')}
            return
        else:
            return
        for r in self.st[k]:
            self.st[k][r] += 1
        for r in dst:
            self.st[k][r] = 0

    def raw(self, text):
        self.lines.append(text)

    def comment(self, text):
        self.lines.append('    ; ' + text)

    def _needed(self, hists, c):
        worst = 0
        for h in hists:
            dist = 0
            for p in reversed(h):
                n = need(p, c)
                if n > dist:
                    worst = max(worst, n - dist)
                dist += p.states
                if dist >= 20:
                    break
        return worst

    def _push(self, ins):
        self.lines.append('    ' + ins.text)
        self.seq.append(ins)
        self.hists = [(h + [ins])[-self.HIST:] for h in self.hists]
        if len(self.hists) > 1:
            uniq = []
            for h in self.hists:
                key = tuple(id(x) for x in h[-self.HIST:])
                if key not in [k for k, _ in uniq]:
                    uniq.append((key, h))
            self.hists = [h for _, h in uniq]

    def _nop(self, n):
        while n > 0:
            k = min(n, 16)
            self._push(Ins('s_nop %d' % (k - 1)))
            self.nops += k
            n -= k

    def __call__(self, text, tag=None):
        for line in text.strip().split('\n'):
            line = line.strip()
            if not line or line.startswith(';'):
                if line:
                    self.lines.append('    ' + line)
                continue
            if line.endswith(':'):
                self.label(line[:-1])
                continue
            ins = Ins(line)
            if ins.mn == 's_waitcnt':
                self._apply_wait(line)
            else:
                self.wait_for(ins.r | ins.w)
            self._nop(self._needed(self.hists, ins))
            self._track(ins, tag)
            if ins.mn.startswith(('s_cbranch', 's_branch')):
                tgt = ins.ops[0]
                if tgt in self.defined:
                    while True:
                        hs = [(h + [ins]) for h in self.hists]
                        worst = 0
                        for t in self.seq[self.defined[tgt]:self.defined[tgt] + 20]:
                            worst = max(worst, self._needed(hs, t))
                            hs = [h + [t] for h in hs]
                        if worst == 0:
                            break
                        self._nop(worst)
                    self._push(ins)
                    ls = self.label_st[tgt]
                    for k in ('vm', 'lg'):
                        for r, c in self.st[k].items():
                            assert r[0] == 't' or (r in ls[k] and ls[k][r] <= c), ('loop wait state', tgt, k, r)
                    assert self.st['sm'] <= ls['sm'], ('loop smem', tgt)
                else:
                    self._push(ins)
                    self.pending.setdefault(tgt, []).extend([list(h) for h in self.hists])
                    self.pend_st[tgt] = self._merge_st(self.pend_st.get(tgt), self.st)
                if ins.mn == 's_branch':
                    self.hists = []
                    self.st = None
            else:
                self._push(ins)
                if ins.mn == 's_endpgm':
                    self.hists = []
                    self.st = None

    def label(self, name):
        self.lines.append(name + ':')
        self.defined[name] = len(self.seq)
        self.hists = self.hists + self.pending.pop(name, [])
        if not self.hists:
            self.hists = [[]]
        if name in self.pend_st:
            self.st = self._merge_st(self.st, self.pend_st.pop(name))
        if self.st is None:
            self.st = {'vm': {}, 'lg': {}, 'sm': set()}
        self.label_st[name] = self._copy_st(self.st)

    def text(self):
        assert not self.pending, self.pending.keys()
        return '\n'.join(self.lines) + '\n'


def f2u(x):
    import struct
    return '0x%08x' % struct.unpack('<I', struct.pack('<f', x))[0]


def vr(a, n=1, k='v'):
    return '%s%d' % (k, a) if n == 1 else '%s[%d:%d]' % (k, a, a + n - 1)


def ar(a, n=1):
    return vr(a, n, 'a')


def sr(a, n=1):
    return vr(a, n, 's')
```

```python
import sys, math
from asmlib import Asm, vr, ar, sr, f2u

NAME = 'adaLN_cond__ssm_conv_s4d__glu_gated_glu__prompt'
LOG2E = 1.4426950408889634

XT = 0x000000
KX = 0x200000
X1T = 0x400000
STATS = 0x600000
MOD = 0x604000
CSB = 0x608000
CSB_STRIDE = 0x6000
WD = 0x620000
WD_STRIDE = 43 * 4096
WP = 0x780000
HH = 0xA80000
H_STRIDE = 172 * 256
WS_USED = 0x1000000
STAMPS = 0x1000000
WS_SRD = 0x1100000

DIAG = False
OPT = {}


class K:
    def __init__(self, a, idx):
        self.a, self.idx, self.nst = a, idx, 0

    def stamp(self, slot):
        if DIAG:
            self.a('s_memrealtime s[%d:%d]' % (80 + 2 * slot, 81 + 2 * slot))
            self.a('s_waitcnt lgkmcnt(0)')

    def end(self, swave, srd, vt=0):
        a = self.a
        if DIAG:
            a('s_waitcnt vmcnt(0)')
            self.stamp(7)
            a('s_mov_b64 exec, 1')
            a('s_lshl_b32 s96, s2, 4')
            a('s_add_u32 s96, s96, %s' % swave)
            a('s_lshl_b32 s96, s96, 6')
            a('s_add_u32 s96, s96, %d' % (STAMPS + self.idx * 256 * 16 * 64))
            a('v_mov_b32 v%d, 0' % vt)
            for i in range(8):
                a('v_mov_b32 v%d, s%d' % (vt + 1, 80 + 2 * i))
                a('buffer_store_dword v%d, v%d, %s, s96 offen offset:%d' % (vt + 1, vt, srd, 4 * i))
        a('s_endpgm')

    def begin(self):
        if DIAG:
            for i in range(1, 8):
                self.a('s_mov_b32 s%d, 0' % (80 + 2 * i))
            self.stamp(0)


def cmul(a, d, x, y, t):
    a('v_pk_mul_f32 %s, %s, %s op_sel:[0,0] op_sel_hi:[0,1]' % (vr(t, 2), vr(x, 2), vr(y, 2)))
    a('v_pk_fma_f32 %s, %s, %s, %s op_sel:[1,1,0] op_sel_hi:[1,0,1] neg_lo:[1,0,0]' % (vr(d, 2), vr(x, 2), vr(y, 2), vr(t, 2)))


K1_RS = 544
K1_CH = 64 * K1_RS
K1_GP = 2 * K1_CH
K1_CNT = K1_GP + 256
K1_LDS = K1_CNT + 64


def gen_k1(a):
    k = K(a, 0)
    WS = 's[36:39]'
    a.label('k1_kernel')
    a('s_cmp_ge_u32 s2, 256')
    a('s_cbranch_scc1 k1_exit')
    k.begin()
    a('s_load_dwordx16 s[4:19], s[0:1], 0')
    a('s_load_dwordx4 s[24:27], s[0:1], 88')
    a('s_load_dwordx2 s[36:37], s[0:1], 120')
    a('v_lshrrev_b32 v1, 6, v0')
    a('v_and_b32 v0, 63, v0')
    a('v_readfirstlane_b32 s3, v1')
    a('s_mov_b32 s38, %d' % WS_SRD)
    a('s_mov_b32 s39, 0x20000')
    a('s_and_b32 s40, s2, 7')
    a('s_lshr_b32 s41, s2, 3')
    a('s_lshl_b32 s42, s40, 5')
    a('s_add_u32 s42, s42, s41')
    a('s_cmp_ge_u32 s3, 8')
    a('s_cbranch_scc1 k1_notkg')
    a('s_and_b32 s43, s3, 3')
    a('s_lshl_b32 s44, s42, 9')
    a('s_lshl_b32 s45, s43, 7')
    a('s_add_u32 s44, s44, s45')
    a('v_lshl_add_u32 v1, v0, 1, s44')
    a('s_lshr_b32 s45, s43, 1')
    a('s_lshl_b32 s46, s42, 1')
    a('s_add_u32 s46, s46, s45')
    a('s_lshl_b32 s47, s46, 1')
    a('v_mov_b32 v2, s47')
    for r in range(4, 10):
        a('v_mov_b32 v%d, 0' % r)
    a('global_load_short_d16_hi v4, v2, s[14:15]')
    a('global_load_short_d16_hi v5, v1, s[6:7]')
    a('global_load_short_d16_hi v6, v1, s[8:9]')
    a('global_load_short_d16_hi v8, v1, s[10:11]')
    a('global_load_short_d16_hi v9, v1, s[12:13]')
    a('global_load_short_d16_hi v7, v2, s[16:17]')
    a('s_barrier')
    a('s_branch k1_kg')
    a.label('k1_notkg')
    a('s_cmp_ge_u32 s3, 12')
    a('s_cbranch_scc1 k1_notg')
    a('s_cmp_ge_u32 s41, 24')
    a('s_cbranch_scc1 k1_exit')
    a('s_mul_i32 s44, s40, 24')
    a('s_add_u32 s44, s44, s41')
    a('s_and_b32 s43, s3, 3')
    a('v_lshrrev_b32 v1, 1, v0')
    a('v_lshlrev_b32 v1, 2, v1')
    a('s_lshl_b32 s45, s43, 7')
    a('v_add_u32 v1, s45, v1')
    a('v_lshlrev_b32 v2, 1, v1')
    a('v_mul_u32_u24 v1, 6144, v1')
    a('v_and_b32 v3, 1, v0')
    a('v_lshl_add_u32 v1, v3, 4, v1')
    a('s_lshl_b32 s45, s44, 5')
    a('s_add_u32 s45, s45, 3072')
    a('v_add_u32 v1, s45, v1')
    a('v_add_u32 v3, 12288, v1')
    a('global_load_dwordx2 v[4:5], v2, s[24:25]')
    a('global_load_dwordx4 v[8:11], v1, s[26:27] offset:-3072')
    a('global_load_dwordx4 v[12:15], v1, s[26:27] offset:3072')
    a('global_load_dwordx4 v[16:19], v3, s[26:27] offset:-3072')
    a('global_load_dwordx4 v[20:23], v3, s[26:27] offset:3072')
    a('s_barrier')
    a('s_branch k1_g')
    a.label('k1_notg')
    a('s_cmp_eq_u32 s3, 13')
    a('s_cbranch_scc1 k1_sload')
    a('s_cmp_eq_u32 s3, 14')
    a('s_cbranch_scc1 k1_pf')
    a('s_lshr_b32 s44, s42, 2')
    a('s_and_b32 s45, s42, 3')
    a('v_and_b32 v2, 3, v0')
    a('v_lshrrev_b32 v3, 2, v0')
    a('v_lshlrev_b32 v1, 13, v2')
    a('v_lshl_add_u32 v1, v3, 4, v1')
    a('s_lshl_b32 s46, s44, 15')
    a('s_lshl_b32 s47, s45, 8')
    a('s_add_u32 s46, s46, s47')
    a('s_add_u32 s46, s46, 4096')
    a('v_add_u32 v1, s46, v1')
    for r in range(8):
        a('global_load_dwordx4 %s, v1, s[4:5] offset:%d' % (vr(8 + 4 * r, 4), 1024 * r - 4096))
    a('s_barrier')
    a('s_branch k1_t')
    a.label('k1_sload')
    a('v_lshrrev_b32 v2, 3, v0')
    a('v_and_b32 v3, 7, v0')
    a('v_lshlrev_b32 v1, 10, v2')
    a('v_lshl_add_u32 v1, v3, 4, v1')
    a('s_lshl_b32 s44, s42, 13')
    a('v_add_u32 v1, s44, v1')
    for r in range(8):
        a('global_load_dwordx4 %s, v1, s[4:5] offset:%d' % (vr(8 + 4 * r, 4), 128 * r))
    a('s_barrier')
    a('s_branch k1_s')
    a.label('k1_pf')
    a('s_getpc_b64 s[48:49]')
    a.label('k1_pcref')
    a('v_mov_b32 v1, %d' % K1_CNT)
    a('v_mov_b32 v4, 0')
    a('v_mov_b32 v5, 0')
    a('v_mov_b32 v6, 0')
    a('v_mov_b32 v7, 0')
    a('ds_write_b128 v1, v[4:7]')
    a('s_mov_b32 s50, code_end-k1_pcref')
    a('s_mov_b32 s51, 0x20000')
    a('v_lshlrev_b32 v2, 4, v0')
    a('s_lshl_b32 s44, s41, 10')
    a('s_add_u32 s44, s44, k2_kernel-k1_pcref')
    a('s_movk_i32 s45, 2048')
    for i in range(5):
        a('buffer_load_dwordx4 v[8:11], v2, s[48:51], %s offen offset:%d' % (('0', i * 1024) if i < 3 else ('s45', i * 1024 - 2048)), tag='pf')
        a.st['vm'].clear()
    a('buffer_load_dwordx4 v[8:11], v2, s[48:51], s44 offen', tag='pf')
    a('s_waitcnt lgkmcnt(0)')
    a('s_barrier')
    k.end('s3', WS)

    a.label('k1_kg')
    a('s_mov_b32 s48, %s' % f2u(LOG2E))
    a('s_and_b32 s47, s3, 1')
    a('s_mul_i32 s49, s45, %d' % K1_CH)
    a('s_lshl_b32 s50, s47, 8')
    a('s_add_u32 s50, s50, s49')
    a('v_lshl_add_u32 v3, v0, 2, s50')
    a('s_lshr_b32 s51, s3, 2')
    a('s_lshl_b32 s51, s51, 1')
    a('s_add_u32 s51, s51, s47')
    a('s_lshl_b32 s52, s51, 3')
    a('s_lshr_b32 s53, 0x33292010, s52')
    a('s_and_b32 s53, s53, 0xff')
    a('s_lshr_b32 s54, 0x03020204, s52')
    a('s_and_b32 s54, s54, 0xff')
    a('s_cmp_eq_u32 s51, 2')
    a('s_cselect_b32 s55, 1, 0')
    a('v_bfe_u32 v10, v0, 2, 2')
    a('v_and_b32 v11, 3, v0')
    a('v_mad_u32_u24 v11, v10, s54, v11')
    a('v_lshrrev_b32 v10, 1, v10')
    a('v_mad_u32_u24 v11, v10, s55, v11')
    a('v_add_u32 v11, s53, v11')
    a('v_lshrrev_b32 v12, 4, v0')
    a('v_lshlrev_b32 v13, 4, v12')
    a('v_add_u32 v13, s49, v13')
    a('s_movk_i32 s56, %d' % K1_RS)
    a('v_mad_u32_u24 v40, v11, s56, v13')
    a('v_and_b32 v10, 15, v0')
    a('v_mad_u32_u24 v41, v10, s56, v13')
    a('v_lshlrev_b32 v42, 5, v10')
    k.stamp(1)
    a('v_mul_f32 v4, s48, v4')
    a('v_mul_f32 v5, s48, v5')
    a('v_exp_f32 v4, v4')
    a('v_exp_f32 v5, v5')
    a('v_cvt_pk_bf16_f32 v5, v4, v5')
    a('v_lshlrev_b32 v4, 16, v5')
    a('v_and_b32 v5, 0xffff0000, v5')
    a('v_mul_f32 v5, v5, v4')
    a('v_mul_f32 v6, v6, v4')
    a('v_mul_f32 v5, %s, v5' % f2u(-LOG2E))
    a('v_mul_f32 v6, 0.15915494, v6')
    k.stamp(2)

    def direct2(d0, p0, d1, p1):
        for d, p in ((d0, p0), (d1, p1)):
            a('v_mul_f32 v%d, %s, v5' % (d + 2, f2u(p)))
            a('v_mul_f32 v%d, %s, v6' % (d + 3, f2u(p)))
        for d in (d0, d1):
            a('v_exp_f32 v%d, v%d' % (d + 2, d + 2))
            a('v_fract_f32 v%d, v%d' % (d + 3, d + 3))
        for d in (d0, d1):
            a('v_cos_f32 v%d, v%d' % (d, d + 3))
            a('v_sin_f32 v%d, v%d' % (d + 1, d + 3))
        for d in (d0, d1):
            a('v_pk_mul_f32 %s, %s, %s op_sel_hi:[1,0]' % (vr(d, 2), vr(d, 2), vr(d + 2, 2)))
    pk = [0]

    def put(row, src, conj=False):
        t = 36 + pk[0] % 4
        pk[0] += 1
        a('v_cvt_pk_bf16_f32 v%d, v%d, %sv%d' % (t, src, '-' if conj else '', src + 1))
        a('ds_write_b32 v3, v%d offset:%d' % (t, row * K1_RS))
    a('s_cmp_ge_u32 s3, 4')
    a('s_cbranch_scc1 k1_set1')
    direct2(12, 1.0, 16, 16.0)
    a('v_add_f32 v4, v4, v4')
    a('v_pk_mul_f32 v[8:9], v[8:9], v[4:5] op_sel_hi:[1,0]')
    a('v_mov_b32 v35, 0x3f80')
    a('ds_write_b32 v3, v35 offset:%d' % (16 * K1_RS))
    put(0, 8, True)
    put(17, 12)
    cmul(a, 8, 8, 16, 24)
    cmul(a, 20, 12, 12, 26)
    put(1, 8, True)
    put(18, 20)
    for i in range(2, 16):
        cmul(a, 8, 8, 16, 24)
        if i < 15:
            cmul(a, 20, 20, 12, 26)
        put(i, 8, True)
        if i < 15:
            put(17 + i, 20)
    a('s_branch k1_tabdone')
    a.label('k1_set1')
    direct2(12, 2.0, 16, 256.0)
    cmul(a, 14, 12, 12, 24)
    cmul(a, 20, 16, 16, 26)
    put(32, 16)
    cmul(a, 22, 16, 12, 24)
    cmul(a, 18, 14, 14, 26)
    put(41, 20)
    put(33, 22)
    seqB = []
    seqB.append((28, 20, 14, 42))
    for r in (43, 44, 45):
        seqB.append((28, 28, 14, r))
    seqB.append((20, 20, 16, 46))
    seqB.append((28, 20, 14, 47))
    for r in (48, 49, 50):
        seqB.append((28, 28, 14, r))
    seqA = [(22, 22, 12, r) for r in range(34, 41)]
    for i in range(max(len(seqA), len(seqB))):
        todo = []
        if i < len(seqA):
            todo.append(seqA[i] + (24,))
        if i < len(seqB):
            todo.append(seqB[i] + (26,))
        for d, x, y, r, t in todo:
            cmul(a, d, x, y, t)
        for d, x, y, r, t in todo:
            put(r, d)
    cmul(a, 30, 18, 18, 24)
    cmul(a, 20, 20, 16, 26)
    for tau in range(4):
        cmul(a, 22, 20, 18, 24)
        cmul(a, 28, 20, 30, 26)
        put(51 + 3 * tau, 20)
        if tau < 3:
            cmul(a, 20, 20, 16, 32)
        put(52 + 3 * tau, 22)
        put(53 + 3 * tau, 28)
    a.label('k1_tabdone')
    a('s_lshl_b32 s57, s45, 2')
    a('s_add_u32 s57, s57, %d' % K1_CNT)
    a('v_mov_b32 v10, s57')
    a('v_mov_b32 v11, 1')
    a('s_waitcnt lgkmcnt(0)')
    k.stamp(3)
    a('s_mov_b64 exec, 1')
    a('ds_add_u32 v10, v11')
    a.label('k1_spin')
    a('ds_read_b32 v11, v10')
    a('s_waitcnt lgkmcnt(0)')
    a('v_readfirstlane_b32 s58, v11')
    a('s_cmp_lt_u32 s58, 4')
    a('s_cbranch_scc1 k1_spin')
    a('s_mov_b64 exec, -1')
    k.stamp(4)
    for ks in range(8):
        a('ds_read_b128 %s, v40 offset:%d' % (vr(48 + 8 * ks, 4), 64 * ks))
        a('ds_read_b128 %s, v41 offset:%d' % (vr(52 + 8 * ks, 4), 64 * ks))
    a('s_lshl_b32 s57, s46, 12')
    a('s_add_u32 s57, s57, %d' % KX)
    a('v_lshrrev_b32 v12, 4, v0')
    for ks in range(8):
        a('v_mfma_f32_16x16x32_bf16 v[44:47], %s, %s, %s' % (vr(48 + 8 * ks, 4), vr(52 + 8 * ks, 4), 'v[44:47]' if ks else '0'))
    a('s_cmp_ge_u32 s51, 2')
    a('s_cbranch_scc1 k1_seg23')
    a('v_lshl_add_u32 v42, v12, 3, v42')
    a('s_cmp_eq_u32 s51, 1')
    a('s_cbranch_scc1 k1_seg1')
    a('v_cmp_eq_u32 vcc, 0, v0')
    a('v_cndmask_b32 v7, 0, v7, vcc')
    a('v_add_f32 v44, v44, v7')
    a('v_cvt_pk_bf16_f32 v44, v44, v45')
    a('v_cvt_pk_bf16_f32 v45, v46, v47')
    a('buffer_store_dwordx2 v[44:45], v42, %s, s57 offen' % WS)
    k.end('s3', WS)
    a.label('k1_seg1')
    a('v_cvt_pk_bf16_f32 v44, v44, v44')
    a('v_cvt_pk_bf16_f32 v45, v45, v46')
    a('buffer_store_dwordx2 v[44:45], v42, %s, s57 offen offset:512' % WS)
    k.end('s3', WS)
    a.label('k1_seg23')
    a('s_cmp_eq_u32 s51, 3')
    a('s_cbranch_scc1 k1_seg3')
    a('v_lshrrev_b32 v13, 1, v12')
    a('v_lshl_add_u32 v42, v13, 9, v42')
    a('v_and_b32 v13, 1, v12')
    a('v_lshl_add_u32 v42, v13, 4, v42')
    a('v_cvt_pk_bf16_f32 v48, v44, v44')
    a('v_cvt_pk_bf16_f32 v49, v44, v45')
    a('v_cvt_pk_bf16_f32 v50, v45, v45')
    a('v_cvt_pk_bf16_f32 v51, v46, v46')
    a('buffer_store_dwordx4 v[48:51], v42, %s, s57 offen offset:1024' % WS)
    k.end('s3', WS)
    a.label('k1_seg3')
    a('v_lshl_add_u32 v42, v12, 9, v42')
    a('v_cvt_pk_bf16_f32 v48, v44, v44')
    a('v_cvt_pk_bf16_f32 v49, v44, v44')
    a('v_cvt_pk_bf16_f32 v50, v44, v45')
    a('v_cvt_pk_bf16_f32 v51, v45, v45')
    a('v_cvt_pk_bf16_f32 v52, v45, v45')
    a('v_cvt_pk_bf16_f32 v53, v45, v45')
    a('v_cvt_pk_bf16_f32 v54, v46, v46')
    a('v_cvt_pk_bf16_f32 v55, v46, v46')
    a('buffer_store_dwordx4 v[48:51], v42, %s, s57 offen offset:2048' % WS)
    a('buffer_store_dwordx4 v[52:55], v42, %s, s57 offen offset:2064' % WS)
    k.end('s3', WS)

    a.label('k1_g')
    a('s_mov_b32 s48, %s' % f2u(-LOG2E))
    a('s_mov_b32 s49, 0x05040100')
    a('s_mov_b32 s50, 0x07060302')
    for r in range(32, 40):
        a('v_mov_b32 v%d, 0' % r)
    k.stamp(1)
    a('v_lshlrev_b32 v24, 16, v4')
    a('v_and_b32 v25, 0xffff0000, v4')
    a('v_lshlrev_b32 v26, 16, v5')
    a('v_and_b32 v27, 0xffff0000, v5')
    for r in range(4):
        a('v_mul_f32 v%d, s48, v%d' % (28 + r, 24 + r))
    for r in range(4):
        a('v_exp_f32 v%d, v%d' % (28 + r, 28 + r))
    for r in range(4):
        a('v_add_f32 v%d, 1.0, v%d' % (28 + r, 28 + r))
    for r in range(4):
        a('v_min_f32 v%d, 0x7f000000, v%d' % (28 + r, 28 + r))
    for r in range(4):
        a('v_rcp_f32 v%d, v%d' % (40 + r, 28 + r))
    for r in range(4):
        a('v_mul_f32 v%d, v%d, v%d' % (44 + r, 24 + r, 40 + r))
    for r in range(4):
        a('v_fma_f32 v%d, -v%d, v%d, v%d' % (24 + r, 44 + r, 28 + r, 24 + r))
    for r in range(4):
        a('v_fmac_f32 v%d, v%d, v%d' % (44 + r, 24 + r, 40 + r))
    a('v_cvt_pk_bf16_f32 v4, v44, v45')
    a('v_cvt_pk_bf16_f32 v5, v46, v47')
    for jp in range(2):
        lo, hi = 8 + 8 * jp, 12 + 8 * jp
        for q in range(4):
            a('v_perm_b32 v%d, v%d, v%d, s49' % (24 + 2 * q, hi + q, lo + q))
            a('v_perm_b32 v%d, v%d, v%d, s50' % (25 + 2 * q, hi + q, lo + q))
        for q in range(8):
            a('v_dot2c_f32_bf16 v%d, v%d, v%d' % (32 + q, 24 + q, 4 + jp))
    k.stamp(2)
    for q in range(4):
        a('v_permlane32_swap_b32 v%d, v%d' % (32 + q, 36 + q))
    for q in range(4):
        a('v_add_f32 v%d, v%d, v%d' % (32 + q, 32 + q, 36 + q))
    a('v_permlane16_swap_b32 v32, v34')
    a('v_permlane16_swap_b32 v33, v35')
    a('v_add_f32 v32, v32, v34')
    a('v_add_f32 v33, v33, v35')
    for sh in (8, 4, 2):
        a('v_add_f32_dpp v32, v32, v32 row_ror:%d row_mask:0xf bank_mask:0xf' % sh)
        a('v_add_f32_dpp v33, v33, v33 row_ror:%d row_mask:0xf bank_mask:0xf' % sh)
    a('v_and_b32 v1, 1, v0')
    a('v_lshrrev_b32 v2, 4, v0')
    a('v_lshlrev_b32 v1, 5, v1')
    a('v_lshl_add_u32 v1, v2, 3, v1')
    a('s_lshl_b32 s51, s43, 6')
    a('s_add_u32 s51, s51, %d' % K1_GP)
    a('v_add_u32 v1, s51, v1')
    a('ds_write_b64 v1, v[32:33]')
    a('v_mov_b32 v10, %d' % (K1_CNT + 8))
    a('v_mov_b32 v11, 1')
    a('s_waitcnt lgkmcnt(0)')
    a('s_mov_b64 exec, 1')
    a('ds_add_rtn_u32 v11, v10, v11')
    a('v_readfirstlane_b32 s52, v11')
    a('s_cmp_lg_u32 s52, 3')
    a('s_cbranch_scc1 k1_gend')
    a('s_mov_b64 exec, 0xffff')
    a('v_lshlrev_b32 v1, 2, v0')
    a('v_add_u32 v2, %d, v1' % K1_GP)
    a('ds_read2_b32 v[4:5], v2 offset0:0 offset1:16')
    a('ds_read2_b32 v[6:7], v2 offset0:32 offset1:48')
    a('s_lshr_b32 s53, s44, 5')
    a('s_cmp_eq_u32 s53, 1')
    a('s_cselect_b32 s54, 1.0, 0')
    a('s_cmp_eq_u32 s53, 4')
    a('s_cselect_b32 s54, 1.0, s54')
    a('s_lshl_b32 s55, s44, 6')
    a('s_add_u32 s55, s55, %d' % MOD)
    a('v_add_f32 v4, v4, v5')
    a('v_add_f32 v6, v6, v7')
    a('v_add_f32 v4, v4, v6')
    a('v_cvt_pk_bf16_f32 v4, v4, v4')
    a('v_lshlrev_b32 v4, 16, v4')
    a('v_add_f32 v4, s54, v4')
    a('v_cvt_pk_bf16_f32 v4, v4, v4')
    a('v_lshlrev_b32 v4, 16, v4')
    a('buffer_store_dword v4, v1, %s, s55 offen' % WS)
    a.label('k1_gend')
    k.end('s3', WS)

    a.label('k1_t')
    a('s_mov_b32 s49, 0x05040100')
    a('s_mov_b32 s50, 0x07060302')
    a('v_lshlrev_b32 v1, 15, v3')
    a('v_lshl_add_u32 v1, v2, 4, v1')
    a('s_lshl_b32 s46, s45, 19')
    a('s_lshl_b32 s47, s44, 7')
    a('s_add_u32 s46, s46, s47')
    a('s_add_u32 s46, s46, %d' % XT)
    k.stamp(1)
    for q in range(4):
        for e in range(2):
            o = 40 + 8 * q + 4 * e
            for j in range(4):
                a('v_perm_b32 v%d, v%d, v%d, %s' % (o + j, 8 + 4 * (2 * j + 1) + q, 8 + 4 * (2 * j) + q, 's50' if e else 's49'))
            a('buffer_store_dwordx4 %s, v1, %s, s46 offen offset:%d' % (vr(o, 4), WS, 64 * e))
        if q < 3:
            a('s_add_u32 s46, s46, 8192')
    k.end('s3', WS)

    a.label('k1_s')
    a('s_mov_b32 s48, 0x3f803f80')
    for r in range(4, 8):
        a('v_mov_b32 v%d, 0' % r)
    a('v_lshrrev_b32 v1, 1, v2')
    a('v_lshlrev_b32 v1, 12, v1')
    a('v_and_b32 v2, 1, v2')
    a('v_lshl_add_u32 v1, v2, 3, v1')
    a('s_lshl_b32 s44, s42, 4')
    a('s_add_u32 s44, s44, %d' % STATS)
    k.stamp(1)
    for r in range(32):
        a('v_dot2c_f32_bf16 v%d, s48, v%d' % (4 + 2 * (r & 1), 8 + r))
        a('v_dot2c_f32_bf16 v%d, v%d, v%d' % (5 + 2 * (r & 1), 8 + r, 8 + r))
    a('v_add_f32 v4, v4, v6')
    a('v_add_f32 v5, v5, v7')
    for m in ('quad_perm:[1,0,3,2]', 'quad_perm:[2,3,0,1]', 'row_half_mirror'):
        a('v_add_f32_dpp v4, v4, v4 %s row_mask:0xf bank_mask:0xf' % m)
        a('v_add_f32_dpp v5, v5, v5 %s row_mask:0xf bank_mask:0xf' % m)
    a('v_mul_f32 v4, %s, v4' % f2u(1 / 512))
    a('v_mul_f32 v5, %s, v5' % f2u(1 / 512))
    a('v_fma_f32 v5, -v4, v4, v5')
    a('v_max_f32 v5, 0, v5')
    a('v_cvt_pk_bf16_f32 v5, v4, v5')
    a('v_lshlrev_b32 v4, 16, v5')
    a('v_and_b32 v5, 0xffff0000, v5')
    a('v_add_f32 v5, %s, v5' % f2u(1e-5))
    a('v_cvt_pk_bf16_f32 v5, v5, v5')
    a('v_lshlrev_b32 v5, 16, v5')
    a('v_sqrt_f32 v5, v5')
    a('v_cvt_pk_bf16_f32 v5, v5, v5')
    a('v_lshlrev_b32 v5, 16, v5')
    a('v_rcp_f32 v6, v5')
    a('v_cmp_eq_u32 vcc, 0, v3')
    a('v_mul_f32 v7, -v4, v6')
    a('s_and_b64 exec, exec, vcc')
    a('buffer_store_dwordx2 v[6:7], v1, %s, s44 offen' % WS)
    k.end('s3', WS)
    a.label('k1_exit')
    a('s_endpgm')
    return dict(name='k1_kernel', grid=256, block=960, lds=K1_LDS, vgpr=112, accum=112)


K2_CS = 4160
K2_KCH = 4 * K2_CS
K2_HB = 2 * K2_KCH
K2_HCH = 4608
K2_RED = K2_HB + 2 * K2_HCH
K2_SP = K2_RED + 16384
K2_LDS = K2_SP + 2048


def gen_k2(a):
    k = K(a, 1)
    WS = 's[36:39]'
    a.label('k2_kernel')
    a('s_cmp_ge_u32 s2, 256')
    a('s_cbranch_scc1 k2_exit')
    k.begin()
    a('s_load_dwordx2 s[36:37], s[0:1], 120')
    a('s_load_dwordx4 s[20:23], s[0:1], 64')
    a('s_load_dwordx2 s[24:25], s[0:1], 80')
    a('v_lshrrev_b32 v1, 6, v0')
    a('v_and_b32 v2, 255, v0')
    a('v_readfirstlane_b32 s3, v1')
    a('v_and_b32 v0, 63, v0')
    a('s_mov_b32 s38, %d' % WS_SRD)
    a('s_mov_b32 s39, 0x20000')
    a('s_and_b32 s40, s2, 7')
    a('s_lshr_b32 s41, s2, 3')
    a('s_lshl_b32 s42, s40, 5')
    a('s_add_u32 s42, s42, s41')
    a('s_lshl_b32 s43, s42, 13')
    a('v_lshlrev_b32 v3, 4, v2')
    a('v_and_b32 v4, 15, v0')
    a('v_lshrrev_b32 v5, 4, v0')
    a('s_cmp_ge_u32 s3, 4')
    a('s_cbranch_scc1 k2_side')
    a('v_lshrrev_b32 v6, 2, v2')
    a('v_and_b32 v7, 3, v2')
    a('v_lshlrev_b32 v6, 7, v6')
    a('v_lshl_add_u32 v6, v7, 4, v6')
    a('s_add_u32 s44, s43, %d' % XT)
    a('s_mov_b32 s45, %d' % STATS)
    a('s_mov_b32 s46, %d' % (STATS + 4096))
    a('s_mov_b32 s47, %d' % (STATS + 8192))
    a('s_mov_b32 s48, %d' % (STATS + 12288))
    a('s_lshl_b32 s49, s42, 3')
    a('s_add_u32 s49, s49, %d' % MOD)
    a('s_lshr_b32 s50, s3, 1')
    a('s_and_b32 s51, s3, 1')
    a('s_waitcnt lgkmcnt(0)')
    a('buffer_load_dwordx4 v[16:19], v6, %s, s44 offen' % WS)
    a('buffer_load_dwordx4 v[20:23], v6, %s, s44 offen offset:64' % WS)
    for j in range(4):
        a('buffer_load_dwordx4 %s, v3, %s, s%d offen' % (vr(24 + 4 * j, 4), WS, 45 + j))
    a('s_buffer_load_dwordx2 s[52:53], %s, s49' % WS)
    a('s_add_u32 s58, s49, 2048')
    a('s_buffer_load_dwordx2 s[54:55], %s, s58' % WS)
    a('s_add_u32 s59, s49, 4096')
    a('s_buffer_load_dwordx2 s[56:57], %s, s59' % WS)
    a('v_lshrrev_b32 v6, 1, v4')
    a('v_lshlrev_b32 v6, 7, v6')
    a('v_and_b32 v7, 1, v4')
    a('v_lshl_add_u32 v6, v7, 5, v6')
    a('v_lshl_add_u32 v6, v5, 3, v6')
    a('s_lshl_b32 s60, s50, 6')
    a('s_lshl_b32 s61, s51, 10')
    a('s_add_u32 s60, s60, s61')
    a('s_add_u32 s60, s60, s44')
    a('s_add_u32 s61, s60, 4096')
    for kk in range(4):
        a('buffer_load_dwordx2 %s, v6, %s, s%d offen offset:%d' % (vr(8 + 2 * kk, 2), WS, 60 + kk // 2, 2048 * (kk & 1)))
    a('v_lshrrev_b32 v6, 5, v0')
    a('v_mul_u32_u24 v6, %d, v6' % K2_HCH)
    a('v_and_b32 v7, 31, v0')
    a('v_lshl_add_u32 v6, v7, 4, v6')
    for r in range(40, 44):
        a('v_mov_b32 v%d, 0' % r)
    a('ds_write_b128 v6, v[40:43] offset:%d' % K2_HB)
    a('v_and_b32 v6, 3, v4')
    a('v_sub_u32 v6, 3, v6')
    a('v_mul_u32_u24 v6, %d, v6' % K2_CS)
    a('v_lshrrev_b32 v7, 2, v4')
    a('v_lshl_add_u32 v6, v7, 3, v6')
    a('v_lshlrev_b32 v7, 4, v5')
    a('v_sub_u32 v6, v6, v7')
    a('s_mul_i32 s62, s50, %d' % K2_KCH)
    a('s_lshl_b32 s63, s51, 8')
    a('s_add_u32 s62, s62, s63')
    a('s_add_u32 s62, s62, 56')
    a('v_add_u32 v1, s62, v6')
    a('v_lshl_add_u32 v6, v4, 5, v7')
    a('s_mul_i32 s62, s50, %d' % K2_HCH)
    a('s_sub_u32 s62, s62, s63')
    a('s_add_u32 s62, s62, %d' % (K2_HB + 480 - 192))
    a('v_add_u32 v2, s62, v6')
    a('s_lshl_b32 s62, s42, 1')
    a('s_add_u32 s62, s62, s50')
    a('s_and_b32 s63, s62, 7')
    a('v_and_b32 v6, 7, v4')
    a('v_xor_b32 v6, s63, v6')
    a('v_lshlrev_b32 v6, 5, v6')
    a('v_lshl_add_u32 v6, v5, 3, v6')
    a('v_lshrrev_b32 v7, 3, v4')
    a('v_lshl_add_u32 v4, v7, 17, v6')
    a('s_lshl_b32 s62, s62, 8')
    a('s_lshl_b32 s63, s51, 18')
    a('s_add_u32 s62, s62, s63')
    a('s_add_u32 s62, s62, %d' % X1T)
    a('v_lshlrev_b32 v5, 4, v0')
    a('s_lshl_b32 s63, s3, 12')
    a('s_add_u32 s63, s63, %d' % K2_RED)
    a('v_add_u32 v6, s63, v5')
    a('s_xor_b32 s64, s3, 1')
    a('s_lshl_b32 s64, s64, 12')
    a('s_add_u32 s64, s64, %d' % K2_RED)
    a('v_add_u32 v7, s64, v5')
    a('s_waitcnt lgkmcnt(0)')
    a('v_mov_b32 v40, s52')
    a('v_mov_b32 v41, s53')
    a('s_cmp_eq_u32 s50, 0')
    a('s_cselect_b32 s56, s56, s57')
    k.stamp(1)
    for q in range(4):
        a('v_lshlrev_b32 v%d, 16, v%d' % (44 + 4 * q, 16 + q))
        a('v_lshlrev_b32 v%d, 16, v%d' % (45 + 4 * q, 20 + q))
        a('v_and_b32 v%d, 0xffff0000, v%d' % (46 + 4 * q, 16 + q))
        a('v_and_b32 v%d, 0xffff0000, v%d' % (47 + 4 * q, 20 + q))
    for t in range(8):
        p = vr(44 + 2 * t, 2)
        s = vr(24 + 2 * t, 2)
        a('v_pk_fma_f32 %s, %s, %s, %s op_sel:[0,0,1] op_sel_hi:[1,0,1]' % (p, p, s, s))
    for t in range(8):
        p = vr(44 + 2 * t, 2)
        a('v_pk_fma_f32 %s, %s, s[54:55], v[40:41]' % (p, p))
    for ch in range(2):
        for q in range(4):
            a('v_cvt_pk_bf16_f32 v%d, v%d, v%d' % (16 + 4 * ch + q, 44 + 2 * (7 - 2 * q) + ch, 44 + 2 * (6 - 2 * q) + ch))
        a('ds_write_b128 v3, %s offset:%d' % (vr(16 + 4 * ch, 4), K2_HB + 512 + ch * K2_HCH))
    a('s_waitcnt lgkmcnt(0)')
    k.stamp(2)
    a('s_barrier')
    k.stamp(3)
    ACC = 16

    def reads(j):
        base = 48 + 64 * (j & 1)
        out = []
        for n in range(8):
            out.append('ds_read_b64 %s, v1 offset:%d' % (vr(base + 8 * n, 2), 64 * j + 512 * n))
            out.append('ds_read_b64 %s, v1 offset:%d' % (vr(base + 8 * n + 2, 2), 64 * j + 512 * n + 8))
            out.append('ds_read_b128 %s, v2 offset:%d' % (vr(base + 8 * n + 4, 4), 64 * (3 - j) + 512 * n))
        return out
    pairs = []
    for n in range(8):
        lo = min(n, 7 - n)
        for o in range(lo + 1):
            pairs.append((n, o))
            if o != n:
                pairs.append((o, n))
    assert len(pairs) == 36
    first = reads(0)
    for r in first[:12]:
        a(r)
    queue = first[12:]
    seen = set()
    for j in range(4):
        if j < 3:
            queue += reads(j + 1)
        base = 48 + 64 * (j & 1)
        for i, (dl, tp) in enumerate(pairs):
            tau = dl + tp
            acc = vr(ACC + 4 * tau, 4)
            a('v_mfma_f32_16x16x32_bf16 %s, %s, %s, %s' % (acc, vr(base + 8 * dl, 4), vr(base + 8 * tp + 4, 4), acc if tau in seen else '0'))
            seen.add(tau)
            n_issue = 1 if (j == 0 or i % 3 != 2) else 0
            for _ in range(n_issue):
                if queue:
                    a(queue.pop(0))
        assert not queue
    k.stamp(4)
    a('s_cmp_eq_u32 s51, 1')
    a('s_cbranch_scc1 k2_tail1')
    for half in range(2):
        if half:
            a.label('k2_tail1')
        for kk in range(4):
            a('ds_write_b128 v6, %s offset:%d' % (vr(ACC + 4 * (2 * kk + 1 - half), 4), 1024 * kk))
        for kk in range(4):
            a('v_lshlrev_b32 v%d, 16, v%d' % (64 + 4 * kk, 8 + 2 * kk))
            a('v_and_b32 v%d, 0xffff0000, v%d' % (65 + 4 * kk, 8 + 2 * kk))
            a('v_lshlrev_b32 v%d, 16, v%d' % (66 + 4 * kk, 9 + 2 * kk))
            a('v_and_b32 v%d, 0xffff0000, v%d' % (67 + 4 * kk, 9 + 2 * kk))
        a('s_waitcnt lgkmcnt(0)')
        a('s_barrier')
        for kk in range(4):
            a('ds_read_b128 %s, v7 offset:%d' % (vr(48 + 4 * kk, 4), 1024 * kk))
        for kk in range(4):
            own = ACC + 4 * (2 * kk + half)
            for e in (0, 2):
                a('v_pk_fma_f32 %s, %s, s[56:57], %s op_sel_hi:[1,0,1]' % (vr(64 + 4 * kk + e, 2), vr(own + e, 2), vr(64 + 4 * kk + e, 2)))
        for kk in range(4):
            for e in (0, 2):
                a('v_pk_fma_f32 %s, %s, s[56:57], %s op_sel_hi:[1,0,1]' % (vr(64 + 4 * kk + e, 2), vr(48 + 4 * kk + e, 2), vr(64 + 4 * kk + e, 2)))
            a('v_cvt_pk_bf16_f32 v%d, v%d, v%d' % (8 + 2 * kk, 64 + 4 * kk, 65 + 4 * kk))
            a('v_cvt_pk_bf16_f32 v%d, v%d, v%d' % (9 + 2 * kk, 66 + 4 * kk, 67 + 4 * kk))
            a('buffer_store_dwordx2 %s, v4, %s, s62 offen' % (vr(8 + 2 * kk, 2), WS))
            if kk < 3:
                a('s_add_u32 s62, s62, 524288')
        k.end('s3', WS)

    a.label('k2_side')
    a('s_add_u32 s44, s43, %d' % (KX - 8))
    a('s_add_u32 s45, s44, 4096')
    a('s_and_b32 s46, s3, 3')
    a('s_waitcnt lgkmcnt(0)')
    for ch in range(2):
        a('buffer_load_dwordx4 %s, v3, %s, s%d offen offset:8' % (vr(12 + 8 * ch, 4), WS, 44 + ch))
        a('buffer_load_dwordx2 %s, v3, %s, s%d offen' % (vr(8 + 8 * ch, 2), WS, 44 + ch))
    a('s_cmp_ge_u32 s42, 172')
    a('s_cbranch_scc1 k2_wdload')
    a('s_lshr_b32 s47, s42, 2')
    a('s_and_b32 s48, s42, 3')
    a('s_lshl_b32 s49, s48, 2')
    a('s_add_u32 s49, s49, s46')
    a('s_lshl_b32 s50, s49, 5')
    a('v_lshlrev_b32 v6, 2, v5')
    a('v_add_u32 v6, s50, v6')
    a('v_lshlrev_b32 v7, 2, v6')
    a('v_mul_u32_u24 v6, 2752, v6')
    a('v_lshl_add_u32 v6, v4, 2, v6')
    a('s_lshl_b32 s51, s47, 6')
    a('s_add_u32 s51, s51, 1376')
    a('v_add_u32 v24, s51, v6')
    a('v_add_u32 v25, %d, v24' % (2 * 2752))
    a('v_add_u32 v26, %d, v24' % (16 * 2752))
    a('v_add_u32 v27, %d, v24' % (18 * 2752))
    for ty in range(2):
        for kap in range(8):
            a('global_load_dword v%d, v%d, s[%d:%d] offset:%d' % (64 + 8 * ty + kap, 24 + kap // 2, 20 + 2 * ty, 21 + 2 * ty, 1376 if kap & 1 else -1376))
    a('s_mov_b32 s52, %d' % (MOD + 3 * 2048))
    a('buffer_load_dwordx4 v[80:83], v7, %s, s52 offen offset:2048' % WS)
    a('buffer_load_dwordx4 v[84:87], v7, %s, s52 offen offset:2112' % WS)
    a('buffer_load_dwordx4 v[88:91], v7, %s, s52 offen' % WS)
    a('buffer_load_dwordx4 v[92:95], v7, %s, s52 offen offset:64' % WS)

    def kcopy():
        a('v_lshrrev_b32 v28, 1, v4')
        a('v_mul_u32_u24 v28, %d, v28' % K2_CS)
        a('v_and_b32 v29, 1, v4')
        a('v_lshl_add_u32 v28, v29, 4, v28')
        for r in range(32, 36):
            a('v_mov_b32 v%d, 0' % r)
        a('ds_write_b128 v28, v[32:35]')
        a('v_cmp_ne_u32 vcc, 0, v2')
        k.stamp(1)
        for ch in range(2):
            P, D = 8 + 8 * ch, 12 + 8 * ch
            o = 32 + K2_KCH * ch
            T = 36 + 12 * ch
            a('ds_write_b128 v3, %s offset:%d' % (vr(D, 4), o))
            a('v_cndmask_b32 v%d, 0, v%d, vcc' % (P, P))
            a('v_cndmask_b32 v%d, 0, v%d, vcc' % (T + 4, P + 1))
            seq = [P, T + 4, D, D + 1, D + 2, D + 3]
            for q in range(4):
                a('v_alignbyte_b32 v%d, v%d, v%d, 2' % (T + q, seq[q + 2], seq[q + 1]))
            a('ds_write_b128 v3, %s offset:%d' % (vr(T, 4), o + K2_CS))
            for q in range(3):
                a('v_mov_b32 v%d, v%d' % (T + 5 + q, D + q))
            a('ds_write_b128 v3, %s offset:%d' % (vr(T + 4, 4), o + 2 * K2_CS))
            for q in range(4):
                a('v_alignbyte_b32 v%d, v%d, v%d, 2' % (T + 8 + q, seq[q + 1], seq[q]))
            a('ds_write_b128 v3, %s offset:%d' % (vr(T + 8, 4), o + 3 * K2_CS))
        a('s_waitcnt lgkmcnt(0)')
        k.stamp(2)
        a('s_barrier')
    kcopy()
    a('s_mov_b32 s53, 0x3f803f80')
    for r in range(8, 16):
        a('v_mov_b32 v%d, 0' % r)
    a('v_lshrrev_b32 v6, 2, v4')
    a('v_lshlrev_b32 v6, 14, v6')
    a('v_and_b32 v7, 3, v4')
    a('v_lshl_add_u32 v6, v7, 6, v6')
    a('v_lshl_add_u32 v6, v5, 8, v6')
    a('s_lshl_b32 s54, s47, 16')
    a('s_lshl_b32 s55, s49, 10')
    a('s_add_u32 s54, s54, s55')
    a('s_add_u32 s54, s54, %d' % WP)
    k.stamp(3)
    for ty in range(2):
        for kap in range(8):
            src = 64 + 8 * ty + kap
            p = 16 + 2 * kap
            a('v_lshlrev_b32 v%d, 16, v%d' % (p, src))
            a('v_and_b32 v%d, 0xffff0000, v%d' % (p + 1, src))
        for kap in range(8):
            p = vr(16 + 2 * kap, 2)
            sel = kap & 1
            a('v_pk_fma_f32 %s, %s, %s, %s op_sel:[%d,0,0] op_sel_hi:[%d,1,1]' % (vr(12 + 2 * ty, 2), vr(88 + (kap & ~1), 2), p, vr(12 + 2 * ty, 2), sel, sel))
            a('v_pk_mul_f32 %s, %s, %s op_sel:[%d,0] op_sel_hi:[%d,1]' % (p, vr(80 + (kap & ~1), 2), p, sel, sel))
        for e in range(2):
            r = 2 * ty + e
            o = 32 + 4 * r
            for q in range(4):
                a('v_cvt_pk_bf16_f32 v%d, v%d, v%d' % (o + q, 16 + 4 * q + e, 18 + 4 * q + e))
            a('buffer_store_dwordx4 %s, v6, %s, s54 offen offset:%d%s' % (vr(o, 4), WS, 16 * r, OPT.get('wp_sc', '')))
            for q in range(4):
                a('v_dot2c_f32_bf16 v%d, s53, v%d' % (8 + r, o + q))
    for b in (8, 12):
        a('v_permlane32_swap_b32 v%d, v%d' % (b, b + 2))
        a('v_permlane32_swap_b32 v%d, v%d' % (b + 1, b + 3))
    for b in (8, 12):
        a('v_add_f32 v%d, v%d, v%d' % (b, b, b + 2))
        a('v_add_f32 v%d, v%d, v%d' % (b + 1, b + 1, b + 3))
    for b in (8, 12):
        a('v_permlane16_swap_b32 v%d, v%d' % (b, b + 1))
    a('v_add_f32 v8, v8, v9')
    a('v_add_f32 v9, v12, v13')
    a('v_lshlrev_b32 v7, 5, v4')
    a('v_lshl_add_u32 v7, v5, 3, v7')
    a('s_lshl_b32 s55, s46, 9')
    a('v_add_u32 v10, s55, v7')
    a('ds_write_b64 v10, v[8:9] offset:%d' % K2_SP)
    a('s_waitcnt lgkmcnt(0)')
    k.stamp(4)
    a('s_barrier')
    a('s_cmp_lg_u32 s46, 0')
    a('s_cbranch_scc1 k2_sideend')
    a('v_lshlrev_b32 v7, 3, v0')
    for w in range(4):
        a('ds_read_b64 %s, v7 offset:%d' % (vr(8 + 2 * w, 2), K2_SP + 512 * w))
    a('s_mul_i32 s55, s48, %d' % CSB_STRIDE)
    a('s_lshl_b32 s56, s47, 9')
    a('s_add_u32 s55, s55, s56')
    a('s_add_u32 s55, s55, %d' % CSB)
    a('v_pk_add_f32 v[8:9], v[8:9], v[10:11]')
    a('v_pk_add_f32 v[12:13], v[12:13], v[14:15]')
    a('v_pk_add_f32 v[8:9], v[8:9], v[12:13]')
    a('buffer_store_dwordx2 v[8:9], v7, %s, s55 offen' % WS)
    a.label('k2_sideend')
    k.end('s3', WS)
    a.label('k2_wdload')
    a('s_sub_u32 s47, s42, 172')
    a('s_lshl_b32 s47, s47, 2')
    a('s_add_u32 s47, s47, s46')
    a('v_lshlrev_b32 v6, 13, v5')
    a('v_lshl_add_u32 v6, v4, 3, v6')
    a('v_add_u32 v6, 4096, v6')

    def wd_loads():
        a('s_and_b32 s48, s47, 7')
        a('s_lshr_b32 s49, s47, 3')
        a('s_lshl_b32 s50, s49, 15')
        a('s_lshl_b32 s51, s48, 7')
        a('s_add_u32 s50, s50, s51')
        a('v_add_u32 v7, s50, v6')
        for kap in range(8):
            a('global_load_dwordx2 %s, v7, s[24:25] offset:%d' % (vr(64 + 2 * kap, 2), 1024 * kap - 4096))
    wd_loads()
    kcopy()
    a('s_mov_b32 s53, 0x05040100')
    a('s_mov_b32 s54, 0x07060302')
    a('v_lshlrev_b32 v8, 4, v0')

    def wd_compute():
        a('s_mul_i32 s55, s48, %d' % WD_STRIDE)
        a('s_lshl_b32 s56, s49, 12')
        a('s_add_u32 s55, s55, s56')
        a('s_add_u32 s55, s55, %d' % WD)
        for c in range(4):
            for q in range(4):
                a('v_perm_b32 v%d, v%d, v%d, %s' % (16 + 4 * c + q, 64 + 2 * (2 * q + 1) + c // 2, 64 + 2 * (2 * q) + c // 2, 's54' if c & 1 else 's53'))
            a('buffer_store_dwordx4 %s, v8, %s, s55 offen offset:%d%s' % (vr(16 + 4 * c, 4), WS, 1024 * c, OPT.get('wp_sc', '')))
    wd_compute()
    a('s_add_u32 s47, s47, 336')
    a('s_cmp_ge_u32 s47, 344')
    a('s_cbranch_scc1 k2_wdend')
    wd_loads()
    wd_compute()
    a.label('k2_wdend')
    k.end('s3', WS)
    a.label('k2_exit')
    a('s_endpgm')
    return dict(name='k2_kernel', grid=256, block=512, lds=K2_LDS, vgpr=176, accum=176)


K3_ST = 131072
K3_CB = K3_ST + 1024
K3_LDS = K3_CB + 4 * 512


def gen_k3(a):
    k = K(a, 2)
    WS = 's[36:39]'
    a.label('k3_kernel')
    a('s_load_dwordx2 s[36:37], s[0:1], 120')
    a('s_and_b32 s40, s2, 7')
    a('s_lshr_b32 s41, s2, 3')
    a('s_and_b32 s42, s40, 1')
    a('s_lshl_b32 s42, s42, 3')
    a('s_and_b32 s43, s41, 7')
    a('s_add_u32 s42, s42, s43')
    a('s_lshr_b32 s43, s40, 1')
    a('s_lshl_b32 s43, s43, 2')
    a('s_lshr_b32 s44, s41, 3')
    a('s_add_u32 s43, s43, s44')
    a('s_cmp_ge_u32 s2, 256')
    a('s_cbranch_scc1 k3_exit')
    a('s_cmp_ge_u32 s43, 15')
    a('s_cbranch_scc1 k3_exit')
    k.begin()
    a('v_lshrrev_b32 v1, 6, v0')
    a('v_and_b32 v0, 63, v0')
    a('v_readfirstlane_b32 s3, v1')
    a('s_mov_b32 s38, %d' % WS_SRD)
    a('s_mov_b32 s39, 0x20000')
    a('v_lshlrev_b32 v1, 4, v0')
    a('s_mul_i32 s45, s43, 12')
    a('s_mul_i32 s46, s3, 3')
    a('s_add_u32 s45, s45, s46')
    a('s_lshl_b32 s46, s45, 14')
    a('s_add_u32 s46, s46, %d' % WP)
    a('s_add_u32 s47, s46, 16384')
    a('s_add_u32 s48, s46, 32768')
    a('s_lshl_b32 s49, s42, 17')
    a('s_lshl_b32 s50, s3, 11')
    a('s_add_u32 s49, s49, s50')
    a('s_add_u32 s49, s49, %d' % X1T)
    a('s_mov_b32 m0, s50')
    a('s_waitcnt lgkmcnt(0)')

    def issue(s):
        a('buffer_load_dwordx4 v1, %s, s49 offen lds' % WS, tag='x%d' % s)
        a('buffer_load_dwordx4 v1, %s, s49 offen offset:1024 lds' % WS, tag='x%d' % s)
        for c in range(3):
            a('buffer_load_dwordx4 %s, v1, %s, s%d offen offset:%d' % (ar(12 * s + 4 * c, 4), WS, 46 + c, 1024 * (s & 3)))
        if s < 15:
            a('s_add_u32 s49, s49, 8192')
            a('s_add_u32 m0, m0, 8192')
            if s & 3 == 3:
                for c in range(3):
                    a('s_add_u32 s%d, s%d, 4096' % (46 + c, 46 + c))
    NPRE = 11
    issue(0)
    a('v_lshlrev_b32 v2, 3, v0')
    a('s_lshl_b32 s51, s45, 7')
    a('s_add_u32 s51, s51, %d' % CSB)
    for q in range(4):
        a('buffer_load_dwordx2 %s, v2, %s, s51 offen' % (vr(200 + 2 * q, 2), WS))
        if q < 3:
            a('s_add_u32 s51, s51, %d' % CSB_STRIDE)
    for s in range(1, NPRE):
        issue(s)
    a('v_lshrrev_b32 v3, 2, v0')
    a('v_and_b32 v4, 3, v0')
    a('v_lshlrev_b32 v4, 3, v4')
    a('v_lshl_add_u32 v4, v3, 8, v4')
    a('v_and_b32 v3, 7, v3')
    a('s_lshl_b32 s52, s3, 1')
    a('v_xor_b32 v3, s52, v3')
    for u in range(8):
        a('v_xor_b32 v5, %d, v3' % u)
        a('v_lshl_add_u32 v%d, v5, 5, v4' % (8 + u))
    for r in range(4, 8):
        a('v_mov_b32 v%d, 0' % r)
    a('s_mov_b32 s53, 0x3f803f80')
    a('v_pk_add_f32 v[200:201], v[200:201], v[202:203]')
    a('v_pk_add_f32 v[204:205], v[204:205], v[206:207]')
    a('v_and_b32 v3, 2, v0')
    a('v_cmp_eq_u32 vcc, 0, v3')
    a('v_mov_b32 v202, %s' % f2u(-LOG2E))
    a('v_cndmask_b32 v202, 1.0, v202, vcc')
    a('v_pk_add_f32 v[200:201], v[200:201], v[204:205]')
    a('s_lshl_b32 s54, s3, 9')
    a('s_add_u32 s54, s54, %d' % K3_CB)
    a('v_pk_mul_f32 v[200:201], v[200:201], v[202:203] op_sel_hi:[1,0]')
    a('v_lshl_add_u32 v2, v0, 2, s54')
    a('ds_write2st64_b32 v2, v200, v201 offset0:0 offset1:1')
    a('v_and_b32 v2, 48, v0')
    a('v_add_u32 v2, s54, v2')
    a('s_waitcnt lgkmcnt(0)')
    CS, BI = 200, 212
    for c in range(3):
        a('ds_read_b128 %s, v2 offset:%d' % (vr(CS + 4 * c, 4), 64 * c))
        a('ds_read_b128 %s, v2 offset:%d' % (vr(BI + 4 * c, 4), 256 + 64 * c))
    k.stamp(1)
    ACC = 16
    XB = 112

    def reads(s):
        base = XB + 32 * (s & 1)
        out = []
        for u in range(8):
            for hf in range(2):
                out.append('ds_read_b64_tr_b16 %s, v%d offset:%d' % (vr(base + 4 * u + 2 * hf, 2), 8 + u, (s & 7) * 8192 + hf * 4096))
        return out
    a.wait_tag('x0')
    a('s_barrier')
    k.stamp(2)
    for r in reads(0):
        a(r)
    for s in range(16):
        queue = []
        if s < 15:
            a.wait_tag('x%d' % (s + 1))
            a('s_barrier')
            if s + NPRE < 16:
                issue(s + NPRE)
            if s == 7:
                for u in range(8):
                    a('v_add_u32 v%d, 0x10000, v%d' % (8 + u, 8 + u))
            queue = reads(s + 1)
        base = XB + 32 * (s & 1)
        dots = []
        for u in range(2):
            for q in range(4):
                dots.append('v_dot2c_f32_bf16 v%d, s53, v%d' % (4 + u, base + 4 * u + q))
                dots.append('v_dot2c_f32_bf16 v%d, v%d, v%d' % (6 + u, base + 4 * u + q, base + 4 * u + q))
        fin = []
        if s == 15:
            fin = [
                'v_permlane32_swap_b32 v4, v5', 'v_permlane32_swap_b32 v6, v7',
                'v_add_f32 v4, v4, v5', 'v_add_f32 v6, v6, v7',
                'v_mov_b32 v5, v4', 'v_mov_b32 v7, v6',
                'v_lshrrev_b32 v2, 5, v0', 'v_xor_b32 v2, s52, v2',
                'v_permlane16_swap_b32 v4, v5', 'v_permlane16_swap_b32 v6, v7',
                'v_add_f32 v4, v4, v5', 'v_add_f32 v6, v6, v7',
                'v_mul_f32 v4, %s, v4' % f2u(1 / 512), 'v_mul_f32 v6, %s, v6' % f2u(1 / 512),
                'v_fma_f32 v6, -v4, v4, v6', 'v_max_f32 v6, 0, v6',
                'v_add_f32 v6, %s, v6' % f2u(1e-5), 'v_rsq_f32 v6, v6',
                'v_and_b32 v3, 15, v0', 'v_lshlrev_b32 v3, 3, v3',
                'v_mul_f32 v7, -v4, v6',
                'v_lshl_add_u32 v2, v2, 7, v3', 'v_add_u32 v2, %d, v2' % K3_ST,
                'ds_write_b64 v2, v[6:7]',
            ]
        extra = dots + fin
        n = 0
        for u in range(8):
            for c in range(3):
                acc = vr(ACC + 12 * u + 4 * c, 4)
                a('v_mfma_f32_16x16x32_bf16 %s, %s, %s, %s' % (acc, ar(12 * s + 4 * c, 4), vr(base + 4 * u, 4), acc if s else '0'))
                n += 1
                if queue and n % 3 != 0:
                    a(queue.pop(0))
                if n >= 4 or s == 15:
                    for _ in range(2 if s == 15 else 1):
                        if extra:
                            a(extra.pop(0))
        assert not queue and not extra
    k.stamp(3)
    a('s_lshl_b32 s54, s52, 7')
    a('v_add_u32 v3, %d, v3' % K3_ST)
    a('s_waitcnt lgkmcnt(0)')
    a('s_barrier')
    SB = 112
    for u in range(8):
        a('s_xor_b32 s55, s54, %d' % (u * 128))
        a('v_add_u32 v2, s55, v3')
        a('ds_read_b64 %s, v2' % vr(SB + 2 * u, 2))
    a('v_lshrrev_b32 v4, 4, v0')
    a('v_xor_b32 v4, s52, v4')
    a('v_xor_b32 v5, 4, v4')
    a('v_and_b32 v6, 15, v0')
    a('v_lshlrev_b32 v6, 4, v6')
    a('s_mov_b32 s55, %d' % H_STRIDE)
    a('v_mad_u32_u24 v4, v4, s55, v6')
    a('v_mad_u32_u24 v5, v5, s55, v6')
    a('s_mul_i32 s55, s42, %d' % (8 * H_STRIDE))
    a('s_lshl_b32 s56, s45, 8')
    a('s_add_u32 s55, s55, s56')
    a('s_add_u32 s55, s55, %d' % HH)
    for u in range(8):
        a('v_mul_f32 v%d, %s, v%d' % (128 + 2 * u, f2u(-LOG2E), SB + 2 * u))
    k.stamp(4)
    T = 144
    for c in range(3):
        if c or True:
            a('s_add_u32 s56, s45, %d' % c)
            a('s_cmp_ge_u32 s56, 172')
            a('s_cbranch_scc1 k3_done')
        for G in range(2):
            HO = 176 + 4 * (2 * c + G)
            us = range(4 * G, 4 * G + 4)
            for u in us:
                t = T + 4 * (u & 3)
                st = vr(SB + 2 * u, 2)
                a('v_pk_fma_f32 %s, %s, %s, %s op_sel:[1,0,0] op_sel_hi:[1,1,1]' % (vr(t, 2), st, vr(CS + 4 * c, 2), vr(BI + 4 * c, 2)))
                a('v_pk_fma_f32 %s, %s, %s, %s op_sel:[1,0,0] op_sel_hi:[1,1,1]' % (vr(t + 2, 2), st, vr(CS + 4 * c + 2, 2), vr(BI + 4 * c + 2, 2)))
            for u in us:
                t = T + 4 * (u & 3)
                acc = ACC + 12 * u + 4 * c
                a('v_pk_fma_f32 %s, %s, %s, %s op_sel_hi:[1,0,1]' % (vr(t, 2), vr(acc, 2), vr(128 + 2 * u, 2), vr(t, 2)))
            for u in us:
                t = T + 4 * (u & 3)
                acc = ACC + 12 * u + 4 * c
                a('v_exp_f32 v%d, v%d' % (t, t))
                a('v_exp_f32 v%d, v%d' % (t + 1, t + 1))
                a('v_pk_fma_f32 %s, %s, %s, %s op_sel_hi:[1,0,1]' % (vr(t + 2, 2), vr(acc + 2, 2), vr(SB + 2 * u, 2), vr(t + 2, 2)))
            for u in us:
                t = T + 4 * (u & 3)
                a('v_pk_add_f32 %s, %s, 1.0 op_sel_hi:[1,0]' % (vr(t, 2), vr(t, 2)))
            for u in us:
                t = T + 4 * (u & 3)
                a('v_rcp_f32 v%d, v%d' % (t, t))
                a('v_rcp_f32 v%d, v%d' % (t + 1, t + 1))
            for u in us:
                t = T + 4 * (u & 3)
                a('v_pk_mul_f32 %s, %s, %s' % (vr(t, 2), vr(t, 2), vr(t + 2, 2)))
            for u in us:
                t = T + 4 * (u & 3)
                a('v_cvt_pk_bf16_f32 v%d, v%d, v%d' % (HO + (u & 3), t, t + 1))
            a('v_permlane32_swap_b32 v%d, v%d' % (HO, HO + 2))
            a('v_permlane32_swap_b32 v%d, v%d' % (HO + 1, HO + 3))
            a('v_permlane16_swap_b32 v%d, v%d' % (HO, HO + 1))
            a('v_permlane16_swap_b32 v%d, v%d' % (HO + 2, HO + 3))
            a('buffer_store_dwordx4 %s, v%d, %s, s55 offen offset:%d' % (vr(HO, 4), 4 + G, WS, 256 * c))
    a.label('k3_done')
    k.end('s3', WS)
    a.label('k3_exit')
    a('s_endpgm')
    return dict(name='k3_kernel', grid=256, block=256, lds=K3_LDS, vgpr=224 + 192, accum=224)


K4_X = 131072
K4_LDS = K4_X + 8192


def gen_k4(a):
    k = K(a, 3)
    WS = 's[36:39]'
    OUT = 's[32:35]'
    a.label('k4_kernel')
    a('s_cmp_ge_u32 s2, 256')
    a('s_cbranch_scc1 k4_exit')
    k.begin()
    a('s_load_dwordx2 s[36:37], s[0:1], 120')
    a('s_load_dwordx2 s[32:33], s[0:1], 104')
    a('v_lshrrev_b32 v1, 6, v0')
    a('v_and_b32 v0, 63, v0')
    a('v_readfirstlane_b32 s3, v1')
    a('s_mov_b32 s38, %d' % WS_SRD)
    a('s_mov_b32 s39, 0x20000')
    a('s_mov_b32 s34, %d' % (2048 * 512 * 2))
    a('s_mov_b32 s35, 0x20000')
    a('s_and_b32 s40, s2, 7')
    a('s_lshr_b32 s41, s2, 3')
    a('s_and_b32 s42, s40, 1')
    a('s_lshl_b32 s42, s42, 4')
    a('s_and_b32 s43, s40, 2')
    a('s_lshl_b32 s43, s43, 2')
    a('s_add_u32 s42, s42, s43')
    a('s_and_b32 s43, s41, 7')
    a('s_add_u32 s42, s42, s43')
    a('s_and_b32 s43, s40, 4')
    a('s_lshr_b32 s44, s41, 3')
    a('s_add_u32 s43, s43, s44')
    a('v_lshlrev_b32 v1, 4, v0')
    a('s_lshl_b32 s45, s42, 2')
    a('s_add_u32 s45, s45, s3')
    a('s_mul_i32 s46, s45, %d' % H_STRIDE)
    a('s_add_u32 s46, s46, %d' % HH)
    a('s_mul_i32 s47, s43, %d' % WD_STRIDE)
    a('s_lshl_b32 s48, s3, 10')
    a('s_add_u32 s47, s47, s48')
    a('s_add_u32 s47, s47, %d' % WD)
    a('s_mov_b32 m0, s48')
    a('s_waitcnt lgkmcnt(0)')
    NS = 43

    def issue(s):
        if s == 32:
            a('s_mov_b32 m0, s48')
        a('buffer_load_dwordx4 v1, %s, s47 offen lds' % WS, tag='w%d' % s)
        a('buffer_load_dwordx4 %s, v1, %s, s46 offen offset:%d' % (ar(4 * s, 4), WS, 1024 * (s & 3)))
        if s < NS - 1:
            a('s_add_u32 s47, s47, 4096')
            a('s_add_u32 m0, m0, 4096')
            if s & 3 == 3:
                a('s_add_u32 s46, s46, 4096')
    for s in range(4):
        issue(s)
    a('s_mov_b32 s49, m0')
    a('v_lshrrev_b32 v2, 3, v0')
    a('v_and_b32 v3, 7, v0')
    a('v_lshlrev_b32 v3, 4, v3')
    a('v_lshl_add_u32 v3, v2, 8, v3')
    a('v_lshrrev_b32 v2, 2, v2')
    a('s_and_b32 s50, s42, 1')
    a('v_xor_b32 v2, s50, v2')
    a('v_lshl_add_u32 v3, v2, 7, v3')
    a('s_lshr_b32 s50, s42, 1')
    a('s_lshl_b32 s50, s50, 17')
    a('s_lshl_b32 s51, s43, 14')
    a('s_add_u32 s50, s50, s51')
    a('s_lshl_b32 s51, s3, 12')
    a('s_add_u32 s50, s50, s51')
    a('s_add_u32 s50, s50, %d' % X1T)
    a('s_lshl_b32 s51, s3, 11')
    a('s_add_u32 m0, s51, %d' % K4_X)
    a('s_add_u32 s52, s50, 1024')
    a('buffer_load_dwordx4 v3, %s, s50 offen lds' % WS, tag='x')
    a('buffer_load_dwordx4 v3, %s, s52 offen offset:1024 lds' % WS, tag='x')
    a('s_mov_b32 m0, s49')
    a('v_and_b32 v4, 15, v0')
    a('v_lshlrev_b32 v5, 4, v4')
    a('s_lshl_b32 s51, s43, 8')
    a('s_add_u32 s51, s51, %d' % (MOD + 5 * 2048))
    a('buffer_load_dwordx4 v[8:11], v5, %s, s51 offen' % WS)
    for s in range(4, 28):
        issue(s)
    a('v_lshrrev_b32 v6, 4, v0')
    a('v_lshlrev_b32 v7, 9, v4')
    a('v_lshl_add_u32 v7, v6, 3, v7')
    a('v_add_u32 v7, %d, v7' % K4_X)
    a('v_add_u32 v2, 0x10000, v1')
    a('v_lshlrev_b32 v5, 3, v4')
    a('v_lshl_add_u32 v5, v6, 12, v5')
    a('s_lshl_b32 s51, s45, 14')
    a('s_lshl_b32 s52, s43, 7')
    a('s_add_u32 s51, s51, s52')
    k.stamp(1)
    ACC = 16
    XR = 32
    WB = 64
    groups = [list(range(g, min(g + 4, NS))) for g in range(0, NS, 4)]
    for j, grp in enumerate(groups):
        a.wait_tag(*(['w%d' % s for s in grp] + (['x'] if j == 1 else [])))
        a('s_barrier')
        if j == 0:
            k.stamp(2)
        rd = []
        for i, s in enumerate(grp):
            slot = s & 31
            for c in range(4):
                rd.append('ds_read_b128 %s, v%d offset:%d' % (vr(WB + 16 * i + 4 * c, 4), 1 if slot < 16 else 2, (slot & 15) * 4096 + 1024 * c))
        for r in rd[:8]:
            a(r)
        rd = rd[8:]
        if j + 7 < len(groups):
            for s in groups[j + 7]:
                issue(s)
        if j == 1:
            for c in range(4):
                a('s_xor_b32 s52, s3, %d' % c)
                a('s_lshl_b32 s52, s52, 5')
                a('v_add_u32 v3, s52, v7')
                a('ds_read_b64 %s, v3 offset:%d' % (vr(XR + 2 * c, 2), 128 * c))
        for i, s in enumerate(grp):
            for c in range(4):
                acc = vr(ACC + 4 * c, 4)
                a('v_mfma_f32_16x16x32_bf16 %s, %s, %s, %s' % (acc, ar(4 * s, 4), vr(WB + 16 * i + 4 * c, 4), acc if s else '0'))
                if rd:
                    a(rd.pop(0))
        if j == 2:
            for c in range(4):
                for e in range(2):
                    a('v_lshlrev_b32 v%d, 16, v%d' % (40 + 4 * c + 2 * e, XR + 2 * c + e))
                    a('v_and_b32 v%d, 0xffff0000, v%d' % (41 + 4 * c + 2 * e, XR + 2 * c + e))
    k.stamp(3)
    for c in range(4):
        for e in (0, 2):
            sel = c & 1
            a('v_pk_fma_f32 %s, %s, %s, %s op_sel:[%d,0,0] op_sel_hi:[%d,1,1]' % (vr(40 + 4 * c + e, 2), vr(8 + (c & 2), 2), vr(ACC + 4 * c + e, 2), vr(40 + 4 * c + e, 2), sel, sel))
    for r in range(4):
        a('v_cvt_pk_bf16_f32 v%d, v%d, v%d' % (XR + 2 * r, 40 + r, 44 + r))
        a('v_cvt_pk_bf16_f32 v%d, v%d, v%d' % (XR + 2 * r + 1, 48 + r, 52 + r))
        a('buffer_store_dwordx2 %s, v5, %s, s51 offen offset:%d' % (vr(XR + 2 * r, 2), OUT, 1024 * r))
    k.end('s3', WS)
    a.label('k4_exit')
    a('s_endpgm')
    return dict(name='k4_kernel', grid=256, block=256, lds=K4_LDS, vgpr=128 + 172, accum=128)


def build(diag=False, opt=None):
    global DIAG, OPT
    DIAG = diag
    OPT = opt or {}
    ref = open('cdna_kernels/%s.s.ref' % NAME).read().split('\n')
    head = [l for l in ref if l.startswith(';') and '@launch' not in l and 'Override launch' not in l and 'grid=ceil' not in l
            and not l.startswith('    ')]
    a = Asm()
    infos = []
    for g in (gen_k1, gen_k2, gen_k3, gen_k4):
        a.raw('.p2align 8')
        infos.append(g(a))
    a.raw('code_end:')
    out = head
    for i in infos:
        out.append('; @launch kernel=%s grid=(%d,1,1) block=(%d,1,1) lds=%d' % (i['name'], i['grid'], i['block'], i['lds']))
    out.append('.amdgcn_target "amdgcn-amd-amdhsa--gfx950"')
    out.append('.text')
    for i in infos:
        out.append('.globl %s' % i['name'])
        out.append('.type %s,@function' % i['name'])
    out.append(a.text())
    out.append('.section .rodata,"a"')
    for i in infos:
        out.append('.p2align 6')
        out.append('.amdhsa_kernel %s' % i['name'])
        out.append('  .amdhsa_next_free_vgpr %d' % i['vgpr'])
        out.append('  .amdhsa_next_free_sgpr 102')
        out.append('  .amdhsa_accum_offset %d' % i['accum'])
        out.append('  .amdhsa_group_segment_fixed_size 0')
        out.append('  .amdhsa_kernarg_size 128')
        out.append('  .amdhsa_user_sgpr_count 2')
        out.append('  .amdhsa_user_sgpr_kernarg_segment_ptr 1')
        out.append('  .amdhsa_system_sgpr_workgroup_id_x 1')
        out.append('.end_amdhsa_kernel')
    return '\n'.join(out) + '\n'


if __name__ == '__main__':
    import argparse
    ap = argparse.ArgumentParser()
    ap.add_argument('-o', default='cdna_kernels/%s.s' % NAME)
    ap.add_argument('--diag', action='store_true')
    ap.add_argument('--opt', action='append', default=[])
    args = ap.parse_args()
    opt = dict(o.split('=', 1) for o in args.opt)
    open(args.o, 'w').write(build(args.diag, opt))
```

```python
import sys, math
from asmlib import Asm, vr, ar, sr, f2u

NAME = 'adaLN_cond__ssm_conv_s4d__glu_gated_glu__prompt'
LOG2E = 1.4426950408889634

XT = 0x000000
KX = 0x200000
X1T = 0x400000
STATS = 0x600000
MOD = 0x604000
CSB = 0x608000
CSB_STRIDE = 0x6000
WD = 0x620000
WD_STRIDE = 43 * 4096
WP = 0x780000
HH = 0xA80000
H_STRIDE = 172 * 256
WS_USED = 0x1000000
STAMPS = 0x1000000
WS_SRD = 0x1100000

DIAG = False
OPT = {}


class K:
    def __init__(self, a, idx):
        self.a, self.idx, self.nst = a, idx, 0

    def stamp(self, slot):
        if DIAG:
            self.a('s_memrealtime s[%d:%d]' % (80 + 2 * slot, 81 + 2 * slot))
            self.a('s_waitcnt lgkmcnt(0)')

    def end(self, swave, srd, vt=0):
        a = self.a
        if OPT.get('dbgtime'):
            a('s_waitcnt vmcnt(0)')
            a('s_memrealtime s[98:99]')
            a('s_load_dwordx2 s[96:97], s[0:1], 112')
            a('s_waitcnt lgkmcnt(0)')
            a('s_sub_u32 s96, s96, %d' % (512 * self.idx))
            a('s_subb_u32 s97, s97, 0')
            a('s_mov_b64 exec, 1')
            a('v_mov_b32 v%d, 0' % vt)
            a('s_not_b32 s99, s100')
            a('v_mov_b32 v%d, s99' % (vt + 1))
            a('global_atomic_umax v%d, v%d, s[96:97] offset:%d' % (vt, vt + 1, 16 * self.idx))
            a('v_mov_b32 v%d, s98' % (vt + 2))
            a('global_atomic_umax v%d, v%d, s[96:97] offset:%d' % (vt, vt + 2, 16 * self.idx + 4))
        if DIAG:
            a('s_waitcnt vmcnt(0)')
            a('s_memtime s[98:99]')
            self.stamp(7)
            a('s_sub_u32 s98, s98, s100')
            a('s_mov_b64 exec, 1')
            a('s_lshl_b32 s96, s2, 4')
            a('s_add_u32 s96, s96, %s' % swave)
            a('s_lshl_b32 s96, s96, 6')
            a('s_add_u32 s96, s96, %d' % (STAMPS + self.idx * 256 * 16 * 64))
            a('v_mov_b32 v%d, 0' % vt)
            for i in range(8):
                a('v_mov_b32 v%d, s%d' % (vt + 1, 80 + 2 * i))
                a('buffer_store_dword v%d, v%d, %s, s96 offen offset:%d' % (vt + 1, vt, srd, 4 * i))
            a('v_mov_b32 v%d, s98' % (vt + 1))
            a('buffer_store_dword v%d, v%d, %s, s96 offen offset:32' % (vt + 1, vt, srd))
        a('s_endpgm')

    def begin(self):
        if OPT.get('dbgtime'):
            self.a('s_memrealtime s[100:101]')
        if DIAG:
            for i in range(1, 8):
                self.a('s_mov_b32 s%d, 0' % (80 + 2 * i))
            self.a('s_memtime s[100:101]')
            self.stamp(0)


def cmul(a, d, x, y, t):
    a('v_pk_mul_f32 %s, %s, %s op_sel:[0,0] op_sel_hi:[0,1]' % (vr(t, 2), vr(x, 2), vr(y, 2)))
    a('v_pk_fma_f32 %s, %s, %s, %s op_sel:[1,1,0] op_sel_hi:[1,0,1] neg_lo:[1,0,0]' % (vr(d, 2), vr(x, 2), vr(y, 2), vr(t, 2)))


K1_RS = 544
K1_CH = 64 * K1_RS
K1_GP = 2 * K1_CH
K1_CNT = K1_GP + 256
K1_LDS = K1_CNT + 64


def gen_k1(a):
    k = K(a, 0)
    WS = 's[36:39]'
    a.label('k1_kernel')
    a('s_cmp_ge_u32 s2, 256')
    a('s_cbranch_scc1 k1_exit')
    k.begin()
    a('s_load_dwordx16 s[4:19], s[0:1], 0')
    a('s_load_dwordx4 s[24:27], s[0:1], 88')
    a('s_load_dwordx2 s[36:37], s[0:1], 120')
    a('v_lshrrev_b32 v1, 6, v0')
    a('v_and_b32 v0, 63, v0')
    a('v_readfirstlane_b32 s3, v1')
    a('s_mov_b32 s38, %d' % WS_SRD)
    a('s_mov_b32 s39, 0x20000')
    a('s_and_b32 s40, s2, 7')
    a('s_lshr_b32 s41, s2, 3')
    a('s_lshl_b32 s42, s40, 5')
    a('s_add_u32 s42, s42, s41')
    a('s_cmp_ge_u32 s3, 8')
    a('s_cbranch_scc1 k1_notkg')
    a('s_and_b32 s43, s3, 3')
    a('s_lshl_b32 s44, s42, 9')
    a('s_lshl_b32 s45, s43, 7')
    a('s_add_u32 s44, s44, s45')
    a('v_lshl_add_u32 v1, v0, 1, s44')
    a('s_lshr_b32 s45, s43, 1')
    a('s_lshl_b32 s46, s42, 1')
    a('s_add_u32 s46, s46, s45')
    a('s_lshl_b32 s47, s46, 1')
    a('v_mov_b32 v2, s47')
    for r in range(4, 10):
        a('v_mov_b32 v%d, 0' % r)
    a('global_load_short_d16_hi v4, v2, s[14:15]')
    a('global_load_short_d16_hi v5, v1, s[6:7]')
    a('global_load_short_d16_hi v6, v1, s[8:9]')
    a('global_load_short_d16_hi v8, v1, s[10:11]')
    a('global_load_short_d16_hi v9, v1, s[12:13]')
    a('global_load_short_d16_hi v7, v2, s[16:17]')
    a('s_barrier')
    a('s_branch k1_kg')
    a.label('k1_notkg')
    a('s_cmp_ge_u32 s3, 12')
    a('s_cbranch_scc1 k1_notg')
    a('s_cmp_ge_u32 s41, 24')
    a('s_cbranch_scc1 k1_exit')
    a('s_mul_i32 s44, s40, 24')
    a('s_add_u32 s44, s44, s41')
    a('s_and_b32 s43, s3, 3')
    a('v_lshrrev_b32 v1, 1, v0')
    a('v_lshlrev_b32 v1, 2, v1')
    a('s_lshl_b32 s45, s43, 7')
    a('v_add_u32 v1, s45, v1')
    a('v_lshlrev_b32 v2, 1, v1')
    a('v_mul_u32_u24 v1, 6144, v1')
    a('v_and_b32 v3, 1, v0')
    a('v_lshl_add_u32 v1, v3, 4, v1')
    a('s_lshl_b32 s45, s44, 5')
    a('s_add_u32 s45, s45, 3072')
    a('v_add_u32 v1, s45, v1')
    a('v_add_u32 v3, 12288, v1')
    a('global_load_dwordx2 v[4:5], v2, s[24:25]')
    a('global_load_dwordx4 v[8:11], v1, s[26:27] offset:-3072')
    a('global_load_dwordx4 v[12:15], v1, s[26:27] offset:3072')
    a('global_load_dwordx4 v[16:19], v3, s[26:27] offset:-3072')
    a('global_load_dwordx4 v[20:23], v3, s[26:27] offset:3072')
    a('s_barrier')
    a('s_branch k1_g')
    a.label('k1_notg')
    a('s_cmp_eq_u32 s3, 13')
    a('s_cbranch_scc1 k1_sload')
    a('s_cmp_eq_u32 s3, 14')
    a('s_cbranch_scc1 k1_pf')
    a('s_lshr_b32 s44, s42, 2')
    a('s_and_b32 s45, s42, 3')
    a('v_and_b32 v2, 3, v0')
    a('v_lshrrev_b32 v3, 2, v0')
    a('v_lshlrev_b32 v1, 13, v2')
    a('v_lshl_add_u32 v1, v3, 4, v1')
    a('s_lshl_b32 s46, s44, 15')
    a('s_lshl_b32 s47, s45, 8')
    a('s_add_u32 s46, s46, s47')
    a('s_add_u32 s46, s46, 4096')
    a('v_add_u32 v1, s46, v1')
    for r in range(8):
        a('global_load_dwordx4 %s, v1, s[4:5] offset:%d' % (vr(8 + 4 * r, 4), 1024 * r - 4096))
    a('s_barrier')
    a('s_branch k1_t')
    a.label('k1_sload')
    a('v_lshrrev_b32 v2, 3, v0')
    a('v_and_b32 v3, 7, v0')
    a('v_lshlrev_b32 v1, 10, v2')
    a('v_lshl_add_u32 v1, v3, 4, v1')
    a('s_lshl_b32 s44, s42, 13')
    a('v_add_u32 v1, s44, v1')
    for r in range(8):
        a('global_load_dwordx4 %s, v1, s[4:5] offset:%d' % (vr(8 + 4 * r, 4), 128 * r))
    a('s_barrier')
    a('s_branch k1_s')
    a.label('k1_pf')
    a('s_getpc_b64 s[48:49]')
    a.label('k1_pcref')
    a('v_mov_b32 v1, %d' % K1_CNT)
    a('v_mov_b32 v4, 0')
    a('v_mov_b32 v5, 0')
    a('v_mov_b32 v6, 0')
    a('v_mov_b32 v7, 0')
    a('ds_write_b128 v1, v[4:7]')
    a('s_mov_b32 s50, code_end-k1_pcref')
    a('s_mov_b32 s51, 0x20000')
    a('v_lshlrev_b32 v2, 4, v0')
    a('s_lshl_b32 s44, s41, 10')
    a('s_add_u32 s44, s44, k2_kernel-k1_pcref')
    a('s_movk_i32 s45, 2048')
    for i in range(5):
        a('buffer_load_dwordx4 v[8:11], v2, s[48:51], %s offen offset:%d' % (('0', i * 1024) if i < 3 else ('s45', i * 1024 - 2048)), tag='pf')
        a.st['vm'].clear()
    a('buffer_load_dwordx4 v[8:11], v2, s[48:51], s44 offen', tag='pf')
    a('s_waitcnt lgkmcnt(0)')
    a('s_barrier')
    k.end('s3', WS)

    a.label('k1_kg')
    a('s_mov_b32 s48, %s' % f2u(LOG2E))
    a('s_and_b32 s47, s3, 1')
    a('s_mul_i32 s49, s45, %d' % K1_CH)
    a('s_lshl_b32 s50, s47, 8')
    a('s_add_u32 s50, s50, s49')
    a('v_lshl_add_u32 v3, v0, 2, s50')
    a('s_lshr_b32 s51, s3, 2')
    a('s_lshl_b32 s51, s51, 1')
    a('s_add_u32 s51, s51, s47')
    a('s_lshl_b32 s52, s51, 3')
    a('s_lshr_b32 s53, 0x33292010, s52')
    a('s_and_b32 s53, s53, 0xff')
    a('s_lshr_b32 s54, 0x03020204, s52')
    a('s_and_b32 s54, s54, 0xff')
    a('s_cmp_eq_u32 s51, 2')
    a('s_cselect_b32 s55, 1, 0')
    a('v_bfe_u32 v10, v0, 2, 2')
    a('v_and_b32 v11, 3, v0')
    a('v_mad_u32_u24 v11, v10, s54, v11')
    a('v_lshrrev_b32 v10, 1, v10')
    a('v_mad_u32_u24 v11, v10, s55, v11')
    a('v_add_u32 v11, s53, v11')
    a('v_lshrrev_b32 v12, 4, v0')
    a('v_lshlrev_b32 v13, 4, v12')
    a('v_add_u32 v13, s49, v13')
    a('s_movk_i32 s56, %d' % K1_RS)
    a('v_mad_u32_u24 v40, v11, s56, v13')
    a('v_and_b32 v10, 15, v0')
    a('v_mad_u32_u24 v41, v10, s56, v13')
    a('v_lshlrev_b32 v42, 5, v10')
    k.stamp(1)
    a('v_mul_f32 v4, s48, v4')
    a('v_mul_f32 v5, s48, v5')
    a('v_exp_f32 v4, v4')
    a('v_exp_f32 v5, v5')
    a('v_cvt_pk_bf16_f32 v5, v4, v5')
    a('v_lshlrev_b32 v4, 16, v5')
    a('v_and_b32 v5, 0xffff0000, v5')
    a('v_mul_f32 v5, v5, v4')
    a('v_mul_f32 v6, v6, v4')
    a('v_mul_f32 v5, %s, v5' % f2u(-LOG2E))
    a('v_mul_f32 v6, 0.15915494, v6')
    k.stamp(2)

    def direct2(d0, p0, d1, p1):
        for d, p in ((d0, p0), (d1, p1)):
            a('v_mul_f32 v%d, %s, v5' % (d + 2, f2u(p)))
            a('v_mul_f32 v%d, %s, v6' % (d + 3, f2u(p)))
        for d in (d0, d1):
            a('v_exp_f32 v%d, v%d' % (d + 2, d + 2))
            a('v_fract_f32 v%d, v%d' % (d + 3, d + 3))
        for d in (d0, d1):
            a('v_cos_f32 v%d, v%d' % (d, d + 3))
            a('v_sin_f32 v%d, v%d' % (d + 1, d + 3))
        for d in (d0, d1):
            a('v_pk_mul_f32 %s, %s, %s op_sel_hi:[1,0]' % (vr(d, 2), vr(d, 2), vr(d + 2, 2)))
    pk = [0]

    def put(row, src, conj=False):
        t = 36 + pk[0] % 4
        pk[0] += 1
        a('v_cvt_pk_bf16_f32 v%d, v%d, %sv%d' % (t, src, '-' if conj else '', src + 1))
        a('ds_write_b32 v3, v%d offset:%d' % (t, row * K1_RS))
    a('s_cmp_ge_u32 s3, 4')
    a('s_cbranch_scc1 k1_set1')
    direct2(12, 1.0, 16, 16.0)
    a('v_add_f32 v4, v4, v4')
    a('v_pk_mul_f32 v[8:9], v[8:9], v[4:5] op_sel_hi:[1,0]')
    a('v_mov_b32 v35, 0x3f80')
    a('ds_write_b32 v3, v35 offset:%d' % (16 * K1_RS))
    put(0, 8, True)
    put(17, 12)
    cmul(a, 8, 8, 16, 24)
    cmul(a, 20, 12, 12, 26)
    put(1, 8, True)
    put(18, 20)
    for i in range(2, 16):
        cmul(a, 8, 8, 16, 24)
        if i < 15:
            cmul(a, 20, 20, 12, 26)
        put(i, 8, True)
        if i < 15:
            put(17 + i, 20)
    a('s_branch k1_tabdone')
    a.label('k1_set1')
    direct2(12, 2.0, 16, 256.0)
    cmul(a, 14, 12, 12, 24)
    cmul(a, 20, 16, 16, 26)
    put(32, 16)
    cmul(a, 22, 16, 12, 24)
    cmul(a, 18, 14, 14, 26)
    put(41, 20)
    put(33, 22)
    seqB = []
    seqB.append((28, 20, 14, 42))
    for r in (43, 44, 45):
        seqB.append((28, 28, 14, r))
    seqB.append((20, 20, 16, 46))
    seqB.append((28, 20, 14, 47))
    for r in (48, 49, 50):
        seqB.append((28, 28, 14, r))
    seqA = [(22, 22, 12, r) for r in range(34, 41)]
    for i in range(max(len(seqA), len(seqB))):
        todo = []
        if i < len(seqA):
            todo.append(seqA[i] + (24,))
        if i < len(seqB):
            todo.append(seqB[i] + (26,))
        for d, x, y, r, t in todo:
            cmul(a, d, x, y, t)
        for d, x, y, r, t in todo:
            put(r, d)
    cmul(a, 30, 18, 18, 24)
    cmul(a, 20, 20, 16, 26)
    for tau in range(4):
        cmul(a, 22, 20, 18, 24)
        cmul(a, 28, 20, 30, 26)
        put(51 + 3 * tau, 20)
        if tau < 3:
            cmul(a, 20, 20, 16, 32)
        put(52 + 3 * tau, 22)
        put(53 + 3 * tau, 28)
    a.label('k1_tabdone')
    a('s_lshl_b32 s57, s45, 2')
    a('s_add_u32 s57, s57, %d' % K1_CNT)
    a('v_mov_b32 v10, s57')
    a('v_mov_b32 v11, 1')
    a('s_waitcnt lgkmcnt(0)')
    k.stamp(3)
    a('s_mov_b64 exec, 1')
    a('ds_add_u32 v10, v11')
    a.label('k1_spin')
    a('ds_read_b32 v11, v10')
    a('s_waitcnt lgkmcnt(0)')
    a('v_readfirstlane_b32 s58, v11')
    a('s_cmp_lt_u32 s58, 4')
    a('s_cbranch_scc1 k1_spin')
    a('s_mov_b64 exec, -1')
    k.stamp(4)
    for ks in range(8):
        a('ds_read_b128 %s, v40 offset:%d' % (vr(48 + 8 * ks, 4), 64 * ks))
        a('ds_read_b128 %s, v41 offset:%d' % (vr(52 + 8 * ks, 4), 64 * ks))
    a('s_lshl_b32 s57, s46, 12')
    a('s_add_u32 s57, s57, %d' % KX)
    a('v_lshrrev_b32 v12, 4, v0')
    for ks in range(8):
        a('v_mfma_f32_16x16x32_bf16 v[44:47], %s, %s, %s' % (vr(48 + 8 * ks, 4), vr(52 + 8 * ks, 4), 'v[44:47]' if ks else '0'))
    a('s_cmp_ge_u32 s51, 2')
    a('s_cbranch_scc1 k1_seg23')
    a('v_lshl_add_u32 v42, v12, 3, v42')
    a('s_cmp_eq_u32 s51, 1')
    a('s_cbranch_scc1 k1_seg1')
    a('v_cmp_eq_u32 vcc, 0, v0')
    a('v_cndmask_b32 v7, 0, v7, vcc')
    a('v_add_f32 v44, v44, v7')
    a('v_cvt_pk_bf16_f32 v44, v44, v45')
    a('v_cvt_pk_bf16_f32 v45, v46, v47')
    a('buffer_store_dwordx2 v[44:45], v42, %s, s57 offen' % WS)
    k.end('s3', WS)
    a.label('k1_seg1')
    a('v_cvt_pk_bf16_f32 v44, v44, v44')
    a('v_cvt_pk_bf16_f32 v45, v45, v46')
    a('buffer_store_dwordx2 v[44:45], v42, %s, s57 offen offset:512' % WS)
    k.end('s3', WS)
    a.label('k1_seg23')
    a('s_cmp_eq_u32 s51, 3')
    a('s_cbranch_scc1 k1_seg3')
    a('v_lshrrev_b32 v13, 1, v12')
    a('v_lshl_add_u32 v42, v13, 9, v42')
    a('v_and_b32 v13, 1, v12')
    a('v_lshl_add_u32 v42, v13, 4, v42')
    a('v_cvt_pk_bf16_f32 v48, v44, v44')
    a('v_cvt_pk_bf16_f32 v49, v44, v45')
    a('v_cvt_pk_bf16_f32 v50, v45, v45')
    a('v_cvt_pk_bf16_f32 v51, v46, v46')
    a('buffer_store_dwordx4 v[48:51], v42, %s, s57 offen offset:1024' % WS)
    k.end('s3', WS)
    a.label('k1_seg3')
    a('v_lshl_add_u32 v42, v12, 9, v42')
    a('v_cvt_pk_bf16_f32 v48, v44, v44')
    a('v_cvt_pk_bf16_f32 v49, v44, v44')
    a('v_cvt_pk_bf16_f32 v50, v44, v45')
    a('v_cvt_pk_bf16_f32 v51, v45, v45')
    a('v_cvt_pk_bf16_f32 v52, v45, v45')
    a('v_cvt_pk_bf16_f32 v53, v45, v45')
    a('v_cvt_pk_bf16_f32 v54, v46, v46')
    a('v_cvt_pk_bf16_f32 v55, v46, v46')
    a('buffer_store_dwordx4 v[48:51], v42, %s, s57 offen offset:2048' % WS)
    a('buffer_store_dwordx4 v[52:55], v42, %s, s57 offen offset:2064' % WS)
    k.end('s3', WS)

    a.label('k1_g')
    a('s_mov_b32 s48, %s' % f2u(-LOG2E))
    a('s_mov_b32 s49, 0x05040100')
    a('s_mov_b32 s50, 0x07060302')
    for r in range(32, 40):
        a('v_mov_b32 v%d, 0' % r)
    k.stamp(1)
    a('v_lshlrev_b32 v24, 16, v4')
    a('v_and_b32 v25, 0xffff0000, v4')
    a('v_lshlrev_b32 v26, 16, v5')
    a('v_and_b32 v27, 0xffff0000, v5')
    for r in range(4):
        a('v_mul_f32 v%d, s48, v%d' % (28 + r, 24 + r))
    for r in range(4):
        a('v_exp_f32 v%d, v%d' % (28 + r, 28 + r))
    for r in range(4):
        a('v_add_f32 v%d, 1.0, v%d' % (28 + r, 28 + r))
    for r in range(4):
        a('v_min_f32 v%d, 0x7f000000, v%d' % (28 + r, 28 + r))
    for r in range(4):
        a('v_rcp_f32 v%d, v%d' % (40 + r, 28 + r))
    for r in range(4):
        a('v_mul_f32 v%d, v%d, v%d' % (44 + r, 24 + r, 40 + r))
    for r in range(4):
        a('v_fma_f32 v%d, -v%d, v%d, v%d' % (24 + r, 44 + r, 28 + r, 24 + r))
    for r in range(4):
        a('v_fmac_f32 v%d, v%d, v%d' % (44 + r, 24 + r, 40 + r))
    a('v_cvt_pk_bf16_f32 v4, v44, v45')
    a('v_cvt_pk_bf16_f32 v5, v46, v47')
    for jp in range(2):
        lo, hi = 8 + 8 * jp, 12 + 8 * jp
        for q in range(4):
            a('v_perm_b32 v%d, v%d, v%d, s49' % (24 + 2 * q, hi + q, lo + q))
            a('v_perm_b32 v%d, v%d, v%d, s50' % (25 + 2 * q, hi + q, lo + q))
        for q in range(8):
            a('v_dot2c_f32_bf16 v%d, v%d, v%d' % (32 + q, 24 + q, 4 + jp))
    k.stamp(2)
    for q in range(4):
        a('v_permlane32_swap_b32 v%d, v%d' % (32 + q, 36 + q))
    for q in range(4):
        a('v_add_f32 v%d, v%d, v%d' % (32 + q, 32 + q, 36 + q))
    a('v_permlane16_swap_b32 v32, v34')
    a('v_permlane16_swap_b32 v33, v35')
    a('v_add_f32 v32, v32, v34')
    a('v_add_f32 v33, v33, v35')
    for sh in (8, 4, 2):
        a('v_add_f32_dpp v32, v32, v32 row_ror:%d row_mask:0xf bank_mask:0xf' % sh)
        a('v_add_f32_dpp v33, v33, v33 row_ror:%d row_mask:0xf bank_mask:0xf' % sh)
    a('v_and_b32 v1, 1, v0')
    a('v_lshrrev_b32 v2, 4, v0')
    a('v_lshlrev_b32 v1, 5, v1')
    a('v_lshl_add_u32 v1, v2, 3, v1')
    a('s_lshl_b32 s51, s43, 6')
    a('s_add_u32 s51, s51, %d' % K1_GP)
    a('v_add_u32 v1, s51, v1')
    a('ds_write_b64 v1, v[32:33]')
    a('v_mov_b32 v10, %d' % (K1_CNT + 8))
    a('v_mov_b32 v11, 1')
    a('s_waitcnt lgkmcnt(0)')
    a('s_mov_b64 exec, 1')
    a('ds_add_rtn_u32 v11, v10, v11')
    a('v_readfirstlane_b32 s52, v11')
    a('s_cmp_lg_u32 s52, 3')
    a('s_cbranch_scc1 k1_gend')
    a('s_mov_b64 exec, 0xffff')
    a('v_lshlrev_b32 v1, 2, v0')
    a('v_add_u32 v2, %d, v1' % K1_GP)
    a('ds_read2_b32 v[4:5], v2 offset0:0 offset1:16')
    a('ds_read2_b32 v[6:7], v2 offset0:32 offset1:48')
    a('s_lshr_b32 s53, s44, 5')
    a('s_cmp_eq_u32 s53, 1')
    a('s_cselect_b32 s54, 1.0, 0')
    a('s_cmp_eq_u32 s53, 4')
    a('s_cselect_b32 s54, 1.0, s54')
    a('s_lshl_b32 s55, s44, 6')
    a('s_add_u32 s55, s55, %d' % MOD)
    a('v_add_f32 v4, v4, v5')
    a('v_add_f32 v6, v6, v7')
    a('v_add_f32 v4, v4, v6')
    a('v_cvt_pk_bf16_f32 v4, v4, v4')
    a('v_lshlrev_b32 v4, 16, v4')
    a('v_add_f32 v4, s54, v4')
    a('v_cvt_pk_bf16_f32 v4, v4, v4')
    a('v_lshlrev_b32 v4, 16, v4')
    a('buffer_store_dword v4, v1, %s, s55 offen' % WS)
    a.label('k1_gend')
    k.end('s3', WS)

    a.label('k1_t')
    a('s_mov_b32 s49, 0x05040100')
    a('s_mov_b32 s50, 0x07060302')
    a('v_lshlrev_b32 v1, 15, v3')
    a('v_lshl_add_u32 v1, v2, 4, v1')
    a('s_lshl_b32 s46, s45, 19')
    a('s_lshl_b32 s47, s44, 7')
    a('s_add_u32 s46, s46, s47')
    a('s_add_u32 s46, s46, %d' % XT)
    k.stamp(1)
    for q in range(4):
        for e in range(2):
            o = 40 + 8 * q + 4 * e
            for j in range(4):
                a('v_perm_b32 v%d, v%d, v%d, %s' % (o + j, 8 + 4 * (2 * j + 1) + q, 8 + 4 * (2 * j) + q, 's50' if e else 's49'))
            a('buffer_store_dwordx4 %s, v1, %s, s46 offen offset:%d' % (vr(o, 4), WS, 64 * e))
        if q < 3:
            a('s_add_u32 s46, s46, 8192')
    k.end('s3', WS)

    a.label('k1_s')
    a('s_mov_b32 s48, 0x3f803f80')
    for r in range(4, 8):
        a('v_mov_b32 v%d, 0' % r)
    a('v_lshrrev_b32 v1, 1, v2')
    a('v_lshlrev_b32 v1, 12, v1')
    a('v_and_b32 v2, 1, v2')
    a('v_lshl_add_u32 v1, v2, 3, v1')
    a('s_lshl_b32 s44, s42, 4')
    a('s_add_u32 s44, s44, %d' % STATS)
    k.stamp(1)
    for r in range(32):
        a('v_dot2c_f32_bf16 v%d, s48, v%d' % (4 + 2 * (r & 1), 8 + r))
        a('v_dot2c_f32_bf16 v%d, v%d, v%d' % (5 + 2 * (r & 1), 8 + r, 8 + r))
    a('v_add_f32 v4, v4, v6')
    a('v_add_f32 v5, v5, v7')
    for m in ('quad_perm:[1,0,3,2]', 'quad_perm:[2,3,0,1]', 'row_half_mirror'):
        a('v_add_f32_dpp v4, v4, v4 %s row_mask:0xf bank_mask:0xf' % m)
        a('v_add_f32_dpp v5, v5, v5 %s row_mask:0xf bank_mask:0xf' % m)
    a('v_mul_f32 v4, %s, v4' % f2u(1 / 512))
    a('v_mul_f32 v5, %s, v5' % f2u(1 / 512))
    a('v_fma_f32 v5, -v4, v4, v5')
    a('v_max_f32 v5, 0, v5')
    a('v_cvt_pk_bf16_f32 v5, v4, v5')
    a('v_lshlrev_b32 v4, 16, v5')
    a('v_and_b32 v5, 0xffff0000, v5')
    a('v_add_f32 v5, %s, v5' % f2u(1e-5))
    a('v_cvt_pk_bf16_f32 v5, v5, v5')
    a('v_lshlrev_b32 v5, 16, v5')
    a('v_sqrt_f32 v5, v5')
    a('v_cvt_pk_bf16_f32 v5, v5, v5')
    a('v_lshlrev_b32 v5, 16, v5')
    a('v_rcp_f32 v6, v5')
    a('v_cmp_eq_u32 vcc, 0, v3')
    a('v_mul_f32 v7, -v4, v6')
    a('s_and_b64 exec, exec, vcc')
    a('buffer_store_dwordx2 v[6:7], v1, %s, s44 offen' % WS)
    k.end('s3', WS)
    a.label('k1_exit')
    a('s_endpgm')
    return dict(name='k1_kernel', grid=256, block=960, lds=K1_LDS, vgpr=112, accum=112)


K2_CS = 4160
K2_KCH = 4 * K2_CS
K2_HB = 2 * K2_KCH
K2_HCH = 4608
K2_RED = K2_HB + 2 * K2_HCH
K2_SP = K2_RED + 16384
K2_LDS = K2_SP + 2048


def gen_k2(a):
    k = K(a, 1)
    WS = 's[36:39]'
    a.label('k2_kernel')
    a('s_cmp_ge_u32 s2, 256')
    a('s_cbranch_scc1 k2_exit')
    k.begin()
    a('s_load_dwordx2 s[36:37], s[0:1], 120')
    a('s_load_dwordx4 s[20:23], s[0:1], 64')
    a('s_load_dwordx2 s[24:25], s[0:1], 80')
    a('v_lshrrev_b32 v1, 6, v0')
    a('v_and_b32 v2, 255, v0')
    a('v_readfirstlane_b32 s3, v1')
    a('v_and_b32 v0, 63, v0')
    a('s_mov_b32 s38, %d' % WS_SRD)
    a('s_mov_b32 s39, 0x20000')
    a('s_and_b32 s40, s2, 7')
    a('s_lshr_b32 s41, s2, 3')
    a('s_lshl_b32 s42, s40, 5')
    a('s_add_u32 s42, s42, s41')
    a('s_lshl_b32 s43, s42, 13')
    a('v_lshlrev_b32 v3, 4, v2')
    a('v_and_b32 v4, 15, v0')
    a('v_lshrrev_b32 v5, 4, v0')
    a('s_cmp_ge_u32 s3, 4')
    a('s_cbranch_scc1 k2_side')
    a('v_lshrrev_b32 v6, 2, v2')
    a('v_and_b32 v7, 3, v2')
    a('v_lshlrev_b32 v6, 7, v6')
    a('v_lshl_add_u32 v6, v7, 4, v6')
    a('s_add_u32 s44, s43, %d' % XT)
    a('s_mov_b32 s45, %d' % STATS)
    a('s_mov_b32 s46, %d' % (STATS + 4096))
    a('s_mov_b32 s47, %d' % (STATS + 8192))
    a('s_mov_b32 s48, %d' % (STATS + 12288))
    a('s_lshl_b32 s49, s42, 3')
    a('s_add_u32 s49, s49, %d' % MOD)
    a('s_lshr_b32 s50, s3, 1')
    a('s_and_b32 s51, s3, 1')
    a('s_waitcnt lgkmcnt(0)')
    a('buffer_load_dwordx4 v[16:19], v6, %s, s44 offen' % WS)
    a('buffer_load_dwordx4 v[20:23], v6, %s, s44 offen offset:64' % WS)
    for j in range(4):
        a('buffer_load_dwordx4 %s, v3, %s, s%d offen' % (vr(24 + 4 * j, 4), WS, 45 + j))
    a('s_buffer_load_dwordx2 s[52:53], %s, s49' % WS)
    a('s_add_u32 s58, s49, 2048')
    a('s_buffer_load_dwordx2 s[54:55], %s, s58' % WS)
    a('s_add_u32 s59, s49, 4096')
    a('s_buffer_load_dwordx2 s[56:57], %s, s59' % WS)
    a('v_lshrrev_b32 v6, 1, v4')
    a('v_lshlrev_b32 v6, 7, v6')
    a('v_and_b32 v7, 1, v4')
    a('v_lshl_add_u32 v6, v7, 5, v6')
    a('v_lshl_add_u32 v6, v5, 3, v6')
    a('s_lshl_b32 s60, s50, 6')
    a('s_lshl_b32 s61, s51, 10')
    a('s_add_u32 s60, s60, s61')
    a('s_add_u32 s60, s60, s44')
    a('s_add_u32 s61, s60, 4096')
    for kk in range(4):
        a('buffer_load_dwordx2 %s, v6, %s, s%d offen offset:%d' % (vr(8 + 2 * kk, 2), WS, 60 + kk // 2, 2048 * (kk & 1)))
    a('v_lshrrev_b32 v6, 5, v0')
    a('v_mul_u32_u24 v6, %d, v6' % K2_HCH)
    a('v_and_b32 v7, 31, v0')
    a('v_lshl_add_u32 v6, v7, 4, v6')
    for r in range(40, 44):
        a('v_mov_b32 v%d, 0' % r)
    a('ds_write_b128 v6, v[40:43] offset:%d' % K2_HB)
    a('v_and_b32 v6, 3, v4')
    a('v_sub_u32 v6, 3, v6')
    a('v_mul_u32_u24 v6, %d, v6' % K2_CS)
    a('v_lshrrev_b32 v7, 2, v4')
    a('v_lshl_add_u32 v6, v7, 3, v6')
    a('v_lshlrev_b32 v7, 4, v5')
    a('v_sub_u32 v6, v6, v7')
    a('s_mul_i32 s62, s50, %d' % K2_KCH)
    a('s_lshl_b32 s63, s51, 8')
    a('s_add_u32 s62, s62, s63')
    a('s_add_u32 s62, s62, 56')
    a('v_add_u32 v1, s62, v6')
    a('v_lshl_add_u32 v6, v4, 5, v7')
    a('s_mul_i32 s62, s50, %d' % K2_HCH)
    a('s_sub_u32 s62, s62, s63')
    a('s_add_u32 s62, s62, %d' % (K2_HB + 480 - 192))
    a('v_add_u32 v2, s62, v6')
    a('s_lshl_b32 s62, s42, 1')
    a('s_add_u32 s62, s62, s50')
    a('s_and_b32 s63, s62, 7')
    a('v_and_b32 v6, 7, v4')
    a('v_xor_b32 v6, s63, v6')
    a('v_lshlrev_b32 v6, 5, v6')
    a('v_lshl_add_u32 v6, v5, 3, v6')
    a('v_lshrrev_b32 v7, 3, v4')
    a('v_lshl_add_u32 v4, v7, 17, v6')
    a('s_lshl_b32 s62, s62, 8')
    a('s_lshl_b32 s63, s51, 18')
    a('s_add_u32 s62, s62, s63')
    a('s_add_u32 s62, s62, %d' % X1T)
    a('v_lshlrev_b32 v5, 4, v0')
    a('s_lshl_b32 s63, s3, 12')
    a('s_add_u32 s63, s63, %d' % K2_RED)
    a('v_add_u32 v6, s63, v5')
    a('s_xor_b32 s64, s3, 1')
    a('s_lshl_b32 s64, s64, 12')
    a('s_add_u32 s64, s64, %d' % K2_RED)
    a('v_add_u32 v7, s64, v5')
    a('s_waitcnt lgkmcnt(0)')
    a('v_mov_b32 v40, s52')
    a('v_mov_b32 v41, s53')
    a('s_cmp_eq_u32 s50, 0')
    a('s_cselect_b32 s56, s56, s57')
    k.stamp(1)
    for q in range(4):
        a('v_lshlrev_b32 v%d, 16, v%d' % (44 + 4 * q, 16 + q))
        a('v_lshlrev_b32 v%d, 16, v%d' % (45 + 4 * q, 20 + q))
        a('v_and_b32 v%d, 0xffff0000, v%d' % (46 + 4 * q, 16 + q))
        a('v_and_b32 v%d, 0xffff0000, v%d' % (47 + 4 * q, 20 + q))
    for t in range(8):
        p = vr(44 + 2 * t, 2)
        s = vr(24 + 2 * t, 2)
        a('v_pk_fma_f32 %s, %s, %s, %s op_sel:[0,0,1] op_sel_hi:[1,0,1]' % (p, p, s, s))
    for t in range(8):
        p = vr(44 + 2 * t, 2)
        a('v_pk_fma_f32 %s, %s, s[54:55], v[40:41]' % (p, p))
    for ch in range(2):
        for q in range(4):
            a('v_cvt_pk_bf16_f32 v%d, v%d, v%d' % (16 + 4 * ch + q, 44 + 2 * (7 - 2 * q) + ch, 44 + 2 * (6 - 2 * q) + ch))
        a('ds_write_b128 v3, %s offset:%d' % (vr(16 + 4 * ch, 4), K2_HB + 512 + ch * K2_HCH))
    a('s_waitcnt lgkmcnt(0)')
    k.stamp(2)
    a('s_barrier')
    k.stamp(3)
    ACC = 16

    def reads(j):
        base = 48 + 64 * (j & 1)
        out = []
        for n in range(8):
            out.append('ds_read_b64 %s, v1 offset:%d' % (vr(base + 8 * n, 2), 64 * j + 512 * n))
            out.append('ds_read_b64 %s, v1 offset:%d' % (vr(base + 8 * n + 2, 2), 64 * j + 512 * n + 8))
            out.append('ds_read_b128 %s, v2 offset:%d' % (vr(base + 8 * n + 4, 4), 64 * (3 - j) + 512 * n))
        return out
    pairs = []
    for n in range(8):
        lo = min(n, 7 - n)
        for o in range(lo + 1):
            pairs.append((n, o))
            if o != n:
                pairs.append((o, n))
    assert len(pairs) == 36
    first = reads(0)
    for r in first[:12]:
        a(r)
    queue = first[12:]
    seen = set()
    for j in range(4):
        if j < 3:
            queue += reads(j + 1)
        base = 48 + 64 * (j & 1)
        for i, (dl, tp) in enumerate(pairs):
            tau = dl + tp
            acc = vr(ACC + 4 * tau, 4)
            a('v_mfma_f32_16x16x32_bf16 %s, %s, %s, %s' % (acc, vr(base + 8 * dl, 4), vr(base + 8 * tp + 4, 4), acc if tau in seen else '0'))
            seen.add(tau)
            n_issue = 1 if (j == 0 or i % 3 != 2) else 0
            for _ in range(n_issue):
                if queue:
                    a(queue.pop(0))
        assert not queue
    k.stamp(4)
    a('s_cmp_eq_u32 s51, 1')
    a('s_cbranch_scc1 k2_tail1')
    for half in range(2):
        if half:
            a.label('k2_tail1')
        for kk in range(4):
            a('ds_write_b128 v6, %s offset:%d' % (vr(ACC + 4 * (2 * kk + 1 - half), 4), 1024 * kk))
        for kk in range(4):
            a('v_lshlrev_b32 v%d, 16, v%d' % (64 + 4 * kk, 8 + 2 * kk))
            a('v_and_b32 v%d, 0xffff0000, v%d' % (65 + 4 * kk, 8 + 2 * kk))
            a('v_lshlrev_b32 v%d, 16, v%d' % (66 + 4 * kk, 9 + 2 * kk))
            a('v_and_b32 v%d, 0xffff0000, v%d' % (67 + 4 * kk, 9 + 2 * kk))
        a('s_waitcnt lgkmcnt(0)')
        a('s_barrier')
        for kk in range(4):
            a('ds_read_b128 %s, v7 offset:%d' % (vr(48 + 4 * kk, 4), 1024 * kk))
        for kk in range(4):
            own = ACC + 4 * (2 * kk + half)
            for e in (0, 2):
                a('v_pk_fma_f32 %s, %s, s[56:57], %s op_sel_hi:[1,0,1]' % (vr(64 + 4 * kk + e, 2), vr(own + e, 2), vr(64 + 4 * kk + e, 2)))
        for kk in range(4):
            for e in (0, 2):
                a('v_pk_fma_f32 %s, %s, s[56:57], %s op_sel_hi:[1,0,1]' % (vr(64 + 4 * kk + e, 2), vr(48 + 4 * kk + e, 2), vr(64 + 4 * kk + e, 2)))
            a('v_cvt_pk_bf16_f32 v%d, v%d, v%d' % (8 + 2 * kk, 64 + 4 * kk, 65 + 4 * kk))
            a('v_cvt_pk_bf16_f32 v%d, v%d, v%d' % (9 + 2 * kk, 66 + 4 * kk, 67 + 4 * kk))
            a('buffer_store_dwordx2 %s, v4, %s, s62 offen' % (vr(8 + 2 * kk, 2), WS))
            if kk < 3:
                a('s_add_u32 s62, s62, 524288')
        k.end('s3', WS)

    a.label('k2_side')
    a('s_add_u32 s44, s43, %d' % (KX - 8))
    a('s_add_u32 s45, s44, 4096')
    a('s_and_b32 s46, s3, 3')
    a('s_waitcnt lgkmcnt(0)')
    for ch in range(2):
        a('buffer_load_dwordx4 %s, v3, %s, s%d offen offset:8' % (vr(12 + 8 * ch, 4), WS, 44 + ch))
        a('buffer_load_dwordx2 %s, v3, %s, s%d offen' % (vr(8 + 8 * ch, 2), WS, 44 + ch))
    a('s_cmp_ge_u32 s42, 172')
    a('s_cbranch_scc1 k2_wdload')
    a('s_lshr_b32 s47, s42, 2')
    a('s_and_b32 s48, s42, 3')
    a('s_lshl_b32 s49, s48, 2')
    a('s_add_u32 s49, s49, s46')
    a('s_lshl_b32 s50, s49, 5')
    a('v_lshlrev_b32 v6, 2, v5')
    a('v_add_u32 v6, s50, v6')
    a('v_lshlrev_b32 v7, 2, v6')
    a('v_mul_u32_u24 v6, 2752, v6')
    a('v_lshl_add_u32 v6, v4, 2, v6')
    a('s_lshl_b32 s51, s47, 6')
    a('s_add_u32 s51, s51, 1376')
    a('v_add_u32 v24, s51, v6')
    a('v_add_u32 v25, %d, v24' % (2 * 2752))
    a('v_add_u32 v26, %d, v24' % (16 * 2752))
    a('v_add_u32 v27, %d, v24' % (18 * 2752))
    for ty in range(2):
        for kap in range(8):
            a('global_load_dword v%d, v%d, s[%d:%d] offset:%d' % (64 + 8 * ty + kap, 24 + kap // 2, 20 + 2 * ty, 21 + 2 * ty, 1376 if kap & 1 else -1376))
    a('s_mov_b32 s52, %d' % (MOD + 3 * 2048))
    a('buffer_load_dwordx4 v[80:83], v7, %s, s52 offen offset:2048' % WS)
    a('buffer_load_dwordx4 v[84:87], v7, %s, s52 offen offset:2112' % WS)
    a('buffer_load_dwordx4 v[88:91], v7, %s, s52 offen' % WS)
    a('buffer_load_dwordx4 v[92:95], v7, %s, s52 offen offset:64' % WS)

    def kcopy():
        a('v_lshrrev_b32 v28, 1, v4')
        a('v_mul_u32_u24 v28, %d, v28' % K2_CS)
        a('v_and_b32 v29, 1, v4')
        a('v_lshl_add_u32 v28, v29, 4, v28')
        for r in range(32, 36):
            a('v_mov_b32 v%d, 0' % r)
        a('ds_write_b128 v28, v[32:35]')
        a('v_cmp_ne_u32 vcc, 0, v2')
        k.stamp(1)
        for ch in range(2):
            P, D = 8 + 8 * ch, 12 + 8 * ch
            o = 32 + K2_KCH * ch
            T = 36 + 12 * ch
            a('ds_write_b128 v3, %s offset:%d' % (vr(D, 4), o))
            a('v_cndmask_b32 v%d, 0, v%d, vcc' % (P, P))
            a('v_cndmask_b32 v%d, 0, v%d, vcc' % (T + 4, P + 1))
            seq = [P, T + 4, D, D + 1, D + 2, D + 3]
            for q in range(4):
                a('v_alignbyte_b32 v%d, v%d, v%d, 2' % (T + q, seq[q + 2], seq[q + 1]))
            a('ds_write_b128 v3, %s offset:%d' % (vr(T, 4), o + K2_CS))
            for q in range(3):
                a('v_mov_b32 v%d, v%d' % (T + 5 + q, D + q))
            a('ds_write_b128 v3, %s offset:%d' % (vr(T + 4, 4), o + 2 * K2_CS))
            for q in range(4):
                a('v_alignbyte_b32 v%d, v%d, v%d, 2' % (T + 8 + q, seq[q + 1], seq[q]))
            a('ds_write_b128 v3, %s offset:%d' % (vr(T + 8, 4), o + 3 * K2_CS))
        a('s_waitcnt lgkmcnt(0)')
        k.stamp(2)
        a('s_barrier')
    kcopy()
    a('s_mov_b32 s53, 0x3f803f80')
    for r in range(8, 16):
        a('v_mov_b32 v%d, 0' % r)
    a('v_lshrrev_b32 v6, 2, v4')
    a('v_lshlrev_b32 v6, 14, v6')
    a('v_and_b32 v7, 3, v4')
    a('v_lshl_add_u32 v6, v7, 6, v6')
    a('v_lshl_add_u32 v6, v5, 8, v6')
    a('s_lshl_b32 s54, s47, 16')
    a('s_lshl_b32 s55, s49, 10')
    a('s_add_u32 s54, s54, s55')
    a('s_add_u32 s54, s54, %d' % WP)
    k.stamp(3)
    for ty in range(2):
        for kap in range(8):
            src = 64 + 8 * ty + kap
            p = 16 + 2 * kap
            a('v_lshlrev_b32 v%d, 16, v%d' % (p, src))
            a('v_and_b32 v%d, 0xffff0000, v%d' % (p + 1, src))
        for kap in range(8):
            p = vr(16 + 2 * kap, 2)
            sel = kap & 1
            a('v_pk_fma_f32 %s, %s, %s, %s op_sel:[%d,0,0] op_sel_hi:[%d,1,1]' % (vr(12 + 2 * ty, 2), vr(88 + (kap & ~1), 2), p, vr(12 + 2 * ty, 2), sel, sel))
            a('v_pk_mul_f32 %s, %s, %s op_sel:[%d,0] op_sel_hi:[%d,1]' % (p, vr(80 + (kap & ~1), 2), p, sel, sel))
        for e in range(2):
            r = 2 * ty + e
            o = 32 + 4 * r
            for q in range(4):
                a('v_cvt_pk_bf16_f32 v%d, v%d, v%d' % (o + q, 16 + 4 * q + e, 18 + 4 * q + e))
            a('buffer_store_dwordx4 %s, v6, %s, s54 offen offset:%d%s' % (vr(o, 4), WS, 16 * r, OPT.get('wp_sc', '')))
            for q in range(4):
                a('v_dot2c_f32_bf16 v%d, s53, v%d' % (8 + r, o + q))
    for b in (8, 12):
        a('v_permlane32_swap_b32 v%d, v%d' % (b, b + 2))
        a('v_permlane32_swap_b32 v%d, v%d' % (b + 1, b + 3))
    for b in (8, 12):
        a('v_add_f32 v%d, v%d, v%d' % (b, b, b + 2))
        a('v_add_f32 v%d, v%d, v%d' % (b + 1, b + 1, b + 3))
    for b in (8, 12):
        a('v_permlane16_swap_b32 v%d, v%d' % (b, b + 1))
    a('v_add_f32 v8, v8, v9')
    a('v_add_f32 v9, v12, v13')
    a('v_lshlrev_b32 v7, 5, v4')
    a('v_lshl_add_u32 v7, v5, 3, v7')
    a('s_lshl_b32 s55, s46, 9')
    a('v_add_u32 v10, s55, v7')
    a('ds_write_b64 v10, v[8:9] offset:%d' % K2_SP)
    a('s_waitcnt lgkmcnt(0)')
    k.stamp(4)
    a('s_barrier')
    a('s_cmp_lg_u32 s46, 0')
    a('s_cbranch_scc1 k2_sideend')
    a('v_lshlrev_b32 v7, 3, v0')
    for w in range(4):
        a('ds_read_b64 %s, v7 offset:%d' % (vr(8 + 2 * w, 2), K2_SP + 512 * w))
    a('s_mul_i32 s55, s48, %d' % CSB_STRIDE)
    a('s_lshl_b32 s56, s47, 9')
    a('s_add_u32 s55, s55, s56')
    a('s_add_u32 s55, s55, %d' % CSB)
    a('v_pk_add_f32 v[8:9], v[8:9], v[10:11]')
    a('v_pk_add_f32 v[12:13], v[12:13], v[14:15]')
    a('v_pk_add_f32 v[8:9], v[8:9], v[12:13]')
    a('buffer_store_dwordx2 v[8:9], v7, %s, s55 offen' % WS)
    a.label('k2_sideend')
    k.end('s3', WS)
    a.label('k2_wdload')
    a('s_sub_u32 s47, s42, 172')
    a('s_lshl_b32 s47, s47, 2')
    a('s_add_u32 s47, s47, s46')
    a('v_lshlrev_b32 v6, 13, v5')
    a('v_lshl_add_u32 v6, v4, 3, v6')
    a('v_add_u32 v6, 4096, v6')

    def wd_loads():
        a('s_and_b32 s48, s47, 7')
        a('s_lshr_b32 s49, s47, 3')
        a('s_lshl_b32 s50, s49, 15')
        a('s_lshl_b32 s51, s48, 7')
        a('s_add_u32 s50, s50, s51')
        a('v_add_u32 v7, s50, v6')
        for kap in range(8):
            a('global_load_dwordx2 %s, v7, s[24:25] offset:%d' % (vr(64 + 2 * kap, 2), 1024 * kap - 4096))
    wd_loads()
    kcopy()
    a('s_mov_b32 s53, 0x05040100')
    a('s_mov_b32 s54, 0x07060302')
    a('v_lshlrev_b32 v8, 4, v0')

    def wd_compute():
        a('s_mul_i32 s55, s48, %d' % WD_STRIDE)
        a('s_lshl_b32 s56, s49, 12')
        a('s_add_u32 s55, s55, s56')
        a('s_add_u32 s55, s55, %d' % WD)
        for c in range(4):
            for q in range(4):
                a('v_perm_b32 v%d, v%d, v%d, %s' % (16 + 4 * c + q, 64 + 2 * (2 * q + 1) + c // 2, 64 + 2 * (2 * q) + c // 2, 's54' if c & 1 else 's53'))
            a('buffer_store_dwordx4 %s, v8, %s, s55 offen offset:%d%s' % (vr(16 + 4 * c, 4), WS, 1024 * c, OPT.get('wp_sc', '')))
    wd_compute()
    a('s_add_u32 s47, s47, 336')
    a('s_cmp_ge_u32 s47, 344')
    a('s_cbranch_scc1 k2_wdend')
    wd_loads()
    wd_compute()
    a.label('k2_wdend')
    k.end('s3', WS)
    a.label('k2_exit')
    a('s_endpgm')
    return dict(name='k2_kernel', grid=256, block=512, lds=K2_LDS, vgpr=176, accum=176)


K3_ST = 131072
K3_CB = K3_ST + 1024
K3_LDS = K3_CB + 4 * 512


def gen_k3(a):
    k = K(a, 2)
    WS = 's[36:39]'
    a.label('k3_kernel')
    a('s_load_dwordx2 s[36:37], s[0:1], 120')
    a('s_and_b32 s40, s2, 7')
    a('s_lshr_b32 s41, s2, 3')
    a('s_and_b32 s42, s40, 1')
    a('s_lshl_b32 s42, s42, 3')
    a('s_and_b32 s43, s41, 7')
    a('s_add_u32 s42, s42, s43')
    a('s_lshr_b32 s43, s40, 1')
    a('s_lshl_b32 s43, s43, 2')
    a('s_lshr_b32 s44, s41, 3')
    a('s_add_u32 s43, s43, s44')
    a('s_cmp_ge_u32 s2, 256')
    a('s_cbranch_scc1 k3_exit')
    a('s_cmp_ge_u32 s43, 15')
    a('s_cbranch_scc1 k3_exit')
    k.begin()
    a('v_lshrrev_b32 v1, 6, v0')
    a('v_and_b32 v0, 63, v0')
    a('v_readfirstlane_b32 s3, v1')
    a('s_mov_b32 s38, %d' % WS_SRD)
    a('s_mov_b32 s39, 0x20000')
    a('v_lshlrev_b32 v1, 4, v0')
    a('s_mul_i32 s45, s43, 12')
    a('s_mul_i32 s46, s3, 3')
    a('s_add_u32 s45, s45, s46')
    a('s_lshl_b32 s46, s45, 14')
    a('s_add_u32 s46, s46, %d' % WP)
    a('s_add_u32 s47, s46, 16384')
    a('s_add_u32 s48, s46, 32768')
    a('s_lshl_b32 s49, s42, 17')
    a('s_lshl_b32 s50, s3, 11')
    a('s_add_u32 s49, s49, s50')
    a('s_add_u32 s49, s49, %d' % X1T)
    a('s_mov_b32 m0, s50')
    a('s_waitcnt lgkmcnt(0)')

    def issue(s):
        a('buffer_load_dwordx4 v1, %s, s49 offen lds' % WS, tag='x%d' % s)
        a('buffer_load_dwordx4 v1, %s, s49 offen offset:1024 lds' % WS, tag='x%d' % s)
        for c in range(3):
            a('buffer_load_dwordx4 %s, v1, %s, s%d offen offset:%d' % (ar(12 * s + 4 * c, 4), WS, 46 + c, 1024 * (s & 3)))
        if s < 15:
            a('s_add_u32 s49, s49, 8192')
            a('s_add_u32 m0, m0, 8192')
            if s & 3 == 3:
                for c in range(3):
                    a('s_add_u32 s%d, s%d, 4096' % (46 + c, 46 + c))
    NPRE = 11
    issue(0)
    a('v_lshlrev_b32 v2, 3, v0')
    a('s_lshl_b32 s51, s45, 7')
    a('s_add_u32 s51, s51, %d' % CSB)
    for q in range(4):
        a('buffer_load_dwordx2 %s, v2, %s, s51 offen' % (vr(200 + 2 * q, 2), WS))
        if q < 3:
            a('s_add_u32 s51, s51, %d' % CSB_STRIDE)
    for s in range(1, NPRE):
        issue(s)
    a('v_lshrrev_b32 v3, 2, v0')
    a('v_and_b32 v4, 3, v0')
    a('v_lshlrev_b32 v4, 3, v4')
    a('v_lshl_add_u32 v4, v3, 8, v4')
    a('v_and_b32 v3, 7, v3')
    a('s_lshl_b32 s52, s3, 1')
    a('v_xor_b32 v3, s52, v3')
    for u in range(8):
        a('v_xor_b32 v5, %d, v3' % u)
        a('v_lshl_add_u32 v%d, v5, 5, v4' % (8 + u))
    for r in range(4, 8):
        a('v_mov_b32 v%d, 0' % r)
    a('s_mov_b32 s53, 0x3f803f80')
    a('v_pk_add_f32 v[200:201], v[200:201], v[202:203]')
    a('v_pk_add_f32 v[204:205], v[204:205], v[206:207]')
    a('v_and_b32 v3, 2, v0')
    a('v_cmp_eq_u32 vcc, 0, v3')
    a('v_mov_b32 v202, %s' % f2u(-LOG2E))
    a('v_cndmask_b32 v202, 1.0, v202, vcc')
    a('v_pk_add_f32 v[200:201], v[200:201], v[204:205]')
    a('s_lshl_b32 s54, s3, 9')
    a('s_add_u32 s54, s54, %d' % K3_CB)
    a('v_pk_mul_f32 v[200:201], v[200:201], v[202:203] op_sel_hi:[1,0]')
    a('v_lshl_add_u32 v2, v0, 2, s54')
    a('ds_write2st64_b32 v2, v200, v201 offset0:0 offset1:1')
    a('v_and_b32 v2, 48, v0')
    a('v_add_u32 v2, s54, v2')
    a('s_waitcnt lgkmcnt(0)')
    CS, BI = 200, 212
    for c in range(3):
        a('ds_read_b128 %s, v2 offset:%d' % (vr(CS + 4 * c, 4), 64 * c))
        a('ds_read_b128 %s, v2 offset:%d' % (vr(BI + 4 * c, 4), 256 + 64 * c))
    k.stamp(1)
    ACC = 16
    XB = 112

    def reads(s):
        base = XB + 32 * (s & 1)
        out = []
        for u in range(8):
            for hf in range(2):
                out.append('ds_read_b64_tr_b16 %s, v%d offset:%d' % (vr(base + 4 * u + 2 * hf, 2), 8 + u, (s & 7) * 8192 + hf * 4096))
        return out
    a.wait_tag('x0')
    a('s_barrier')
    k.stamp(2)
    for r in reads(0):
        a(r)
    for s in range(16):
        queue = []
        if s < 15:
            a.wait_tag('x%d' % (s + 1))
            a('s_barrier')
            if s + NPRE < 16:
                issue(s + NPRE)
            if s == 7:
                for u in range(8):
                    a('v_add_u32 v%d, 0x10000, v%d' % (8 + u, 8 + u))
            queue = reads(s + 1)
        base = XB + 32 * (s & 1)
        dots = []
        for u in range(2):
            for q in range(4):
                dots.append('v_dot2c_f32_bf16 v%d, s53, v%d' % (4 + u, base + 4 * u + q))
                dots.append('v_dot2c_f32_bf16 v%d, v%d, v%d' % (6 + u, base + 4 * u + q, base + 4 * u + q))
        fin = []
        if s == 15:
            fin = [
                'v_permlane32_swap_b32 v4, v5', 'v_permlane32_swap_b32 v6, v7',
                'v_add_f32 v4, v4, v5', 'v_add_f32 v6, v6, v7',
                'v_mov_b32 v5, v4', 'v_mov_b32 v7, v6',
                'v_lshrrev_b32 v2, 5, v0', 'v_xor_b32 v2, s52, v2',
                'v_permlane16_swap_b32 v4, v5', 'v_permlane16_swap_b32 v6, v7',
                'v_add_f32 v4, v4, v5', 'v_add_f32 v6, v6, v7',
                'v_mul_f32 v4, %s, v4' % f2u(1 / 512), 'v_mul_f32 v6, %s, v6' % f2u(1 / 512),
                'v_fma_f32 v6, -v4, v4, v6', 'v_max_f32 v6, 0, v6',
                'v_add_f32 v6, %s, v6' % f2u(1e-5), 'v_rsq_f32 v6, v6',
                'v_and_b32 v3, 15, v0', 'v_lshlrev_b32 v3, 3, v3',
                'v_mul_f32 v7, -v4, v6',
                'v_lshl_add_u32 v2, v2, 7, v3', 'v_add_u32 v2, %d, v2' % K3_ST,
                'ds_write_b64 v2, v[6:7]',
            ]
        extra = dots + fin
        n = 0
        for u in range(8):
            for c in range(3):
                acc = vr(ACC + 12 * u + 4 * c, 4)
                a('v_mfma_f32_16x16x32_bf16 %s, %s, %s, %s' % (acc, ar(12 * s + 4 * c, 4), vr(base + 4 * u, 4), acc if s else '0'))
                n += 1
                if queue and n % 3 != 0:
                    a(queue.pop(0))
                if n >= 4 or s == 15:
                    for _ in range(2 if s == 15 else 1):
                        if extra:
                            a(extra.pop(0))
        assert not queue and not extra
    k.stamp(3)
    a('s_lshl_b32 s54, s52, 7')
    a('v_add_u32 v3, %d, v3' % K3_ST)
    a('s_waitcnt lgkmcnt(0)')
    a('s_barrier')
    SB = 112
    for u in range(8):
        a('s_xor_b32 s55, s54, %d' % (u * 128))
        a('v_add_u32 v2, s55, v3')
        a('ds_read_b64 %s, v2' % vr(SB + 2 * u, 2))
    a('v_lshrrev_b32 v4, 4, v0')
    a('v_xor_b32 v4, s52, v4')
    a('v_xor_b32 v5, 4, v4')
    a('v_and_b32 v6, 15, v0')
    a('v_lshlrev_b32 v6, 4, v6')
    a('s_mov_b32 s55, %d' % H_STRIDE)
    a('v_mad_u32_u24 v4, v4, s55, v6')
    a('v_mad_u32_u24 v5, v5, s55, v6')
    a('s_mul_i32 s55, s42, %d' % (8 * H_STRIDE))
    a('s_lshl_b32 s56, s45, 8')
    a('s_add_u32 s55, s55, s56')
    a('s_add_u32 s55, s55, %d' % HH)
    for u in range(8):
        a('v_mul_f32 v%d, %s, v%d' % (128 + 2 * u, f2u(-LOG2E), SB + 2 * u))
    k.stamp(4)
    T = 144
    for c in range(3):
        if c or True:
            a('s_add_u32 s56, s45, %d' % c)
            a('s_cmp_ge_u32 s56, 172')
            a('s_cbranch_scc1 k3_done')
        for G in range(2):
            HO = 176 + 4 * (2 * c + G)
            us = range(4 * G, 4 * G + 4)
            for u in us:
                t = T + 4 * (u & 3)
                st = vr(SB + 2 * u, 2)
                a('v_pk_fma_f32 %s, %s, %s, %s op_sel:[1,0,0] op_sel_hi:[1,1,1]' % (vr(t, 2), st, vr(CS + 4 * c, 2), vr(BI + 4 * c, 2)))
                a('v_pk_fma_f32 %s, %s, %s, %s op_sel:[1,0,0] op_sel_hi:[1,1,1]' % (vr(t + 2, 2), st, vr(CS + 4 * c + 2, 2), vr(BI + 4 * c + 2, 2)))
            for u in us:
                t = T + 4 * (u & 3)
                acc = ACC + 12 * u + 4 * c
                a('v_pk_fma_f32 %s, %s, %s, %s op_sel_hi:[1,0,1]' % (vr(t, 2), vr(acc, 2), vr(128 + 2 * u, 2), vr(t, 2)))
            for u in us:
                t = T + 4 * (u & 3)
                acc = ACC + 12 * u + 4 * c
                a('v_exp_f32 v%d, v%d' % (t, t))
                a('v_exp_f32 v%d, v%d' % (t + 1, t + 1))
                a('v_pk_fma_f32 %s, %s, %s, %s op_sel_hi:[1,0,1]' % (vr(t + 2, 2), vr(acc + 2, 2), vr(SB + 2 * u, 2), vr(t + 2, 2)))
            for u in us:
                t = T + 4 * (u & 3)
                a('v_pk_add_f32 %s, %s, 1.0 op_sel_hi:[1,0]' % (vr(t, 2), vr(t, 2)))
            for u in us:
                t = T + 4 * (u & 3)
                a('v_rcp_f32 v%d, v%d' % (t, t))
                a('v_rcp_f32 v%d, v%d' % (t + 1, t + 1))
            for u in us:
                t = T + 4 * (u & 3)
                a('v_pk_mul_f32 %s, %s, %s' % (vr(t, 2), vr(t, 2), vr(t + 2, 2)))
            for u in us:
                t = T + 4 * (u & 3)
                a('v_cvt_pk_bf16_f32 v%d, v%d, v%d' % (HO + (u & 3), t, t + 1))
            a('v_permlane32_swap_b32 v%d, v%d' % (HO, HO + 2))
            a('v_permlane32_swap_b32 v%d, v%d' % (HO + 1, HO + 3))
            a('v_permlane16_swap_b32 v%d, v%d' % (HO, HO + 1))
            a('v_permlane16_swap_b32 v%d, v%d' % (HO + 2, HO + 3))
            a('buffer_store_dwordx4 %s, v%d, %s, s55 offen offset:%d' % (vr(HO, 4), 4 + G, WS, 256 * c))
    a.label('k3_done')
    k.end('s3', WS)
    a.label('k3_exit')
    a('s_endpgm')
    return dict(name='k3_kernel', grid=256, block=256, lds=K3_LDS, vgpr=224 + 192, accum=224)


K4_X = 131072
K4_LDS = K4_X + 8192


def gen_k4(a):
    k = K(a, 3)
    WS = 's[36:39]'
    OUT = 's[32:35]'
    a.label('k4_kernel')
    a('s_cmp_ge_u32 s2, 256')
    a('s_cbranch_scc1 k4_exit')
    k.begin()
    a('s_load_dwordx2 s[36:37], s[0:1], 120')
    a('s_load_dwordx2 s[32:33], s[0:1], 104')
    a('v_lshrrev_b32 v1, 6, v0')
    a('v_and_b32 v0, 63, v0')
    a('v_readfirstlane_b32 s3, v1')
    a('s_mov_b32 s38, %d' % WS_SRD)
    a('s_mov_b32 s39, 0x20000')
    a('s_mov_b32 s34, %d' % (2048 * 512 * 2))
    a('s_mov_b32 s35, 0x20000')
    a('s_and_b32 s40, s2, 7')
    a('s_lshr_b32 s41, s2, 3')
    a('s_and_b32 s42, s40, 1')
    a('s_lshl_b32 s42, s42, 4')
    a('s_and_b32 s43, s40, 2')
    a('s_lshl_b32 s43, s43, 2')
    a('s_add_u32 s42, s42, s43')
    a('s_and_b32 s43, s41, 7')
    a('s_add_u32 s42, s42, s43')
    a('s_and_b32 s43, s40, 4')
    a('s_lshr_b32 s44, s41, 3')
    a('s_add_u32 s43, s43, s44')
    a('v_lshlrev_b32 v1, 4, v0')
    a('s_lshl_b32 s45, s42, 2')
    a('s_add_u32 s45, s45, s3')
    a('s_mul_i32 s46, s45, %d' % H_STRIDE)
    a('s_add_u32 s46, s46, %d' % HH)
    a('s_mul_i32 s47, s43, %d' % WD_STRIDE)
    a('s_lshl_b32 s48, s3, 10')
    a('s_add_u32 s47, s47, s48')
    a('s_add_u32 s47, s47, %d' % WD)
    a('s_mov_b32 m0, s48')
    a('s_waitcnt lgkmcnt(0)')
    NS = 43

    def issue(s):
        if s == 32:
            a('s_mov_b32 m0, s48')
        a('buffer_load_dwordx4 v1, %s, s47 offen lds' % WS, tag='w%d' % s)
        a('buffer_load_dwordx4 %s, v1, %s, s46 offen offset:%d' % (ar(4 * s, 4), WS, 1024 * (s & 3)))
        if s < NS - 1:
            a('s_add_u32 s47, s47, 4096')
            a('s_add_u32 m0, m0, 4096')
            if s & 3 == 3:
                a('s_add_u32 s46, s46, 4096')
    for s in range(4):
        issue(s)
    a('s_mov_b32 s49, m0')
    a('v_lshrrev_b32 v2, 3, v0')
    a('v_and_b32 v3, 7, v0')
    a('v_lshlrev_b32 v3, 4, v3')
    a('v_lshl_add_u32 v3, v2, 8, v3')
    a('v_lshrrev_b32 v2, 2, v2')
    a('s_and_b32 s50, s42, 1')
    a('v_xor_b32 v2, s50, v2')
    a('v_lshl_add_u32 v3, v2, 7, v3')
    a('s_lshr_b32 s50, s42, 1')
    a('s_lshl_b32 s50, s50, 17')
    a('s_lshl_b32 s51, s43, 14')
    a('s_add_u32 s50, s50, s51')
    a('s_lshl_b32 s51, s3, 12')
    a('s_add_u32 s50, s50, s51')
    a('s_add_u32 s50, s50, %d' % X1T)
    a('s_lshl_b32 s51, s3, 11')
    a('s_add_u32 m0, s51, %d' % K4_X)
    a('s_add_u32 s52, s50, 1024')
    a('buffer_load_dwordx4 v3, %s, s50 offen lds' % WS, tag='x')
    a('buffer_load_dwordx4 v3, %s, s52 offen offset:1024 lds' % WS, tag='x')
    a('s_mov_b32 m0, s49')
    a('v_and_b32 v4, 15, v0')
    a('v_lshlrev_b32 v5, 4, v4')
    a('s_lshl_b32 s51, s43, 8')
    a('s_add_u32 s51, s51, %d' % (MOD + 5 * 2048))
    a('buffer_load_dwordx4 v[8:11], v5, %s, s51 offen' % WS)
    for s in range(4, 28):
        issue(s)
    a('v_lshrrev_b32 v6, 4, v0')
    a('v_lshlrev_b32 v7, 9, v4')
    a('v_lshl_add_u32 v7, v6, 3, v7')
    a('v_add_u32 v7, %d, v7' % K4_X)
    a('v_add_u32 v2, 0x10000, v1')
    a('v_lshlrev_b32 v5, 3, v4')
    a('v_lshl_add_u32 v5, v6, 12, v5')
    a('s_lshl_b32 s51, s45, 14')
    a('s_lshl_b32 s52, s43, 7')
    a('s_add_u32 s51, s51, s52')
    k.stamp(1)
    ACC = 16
    XR = 32
    WB = 64
    groups = [list(range(g, min(g + 4, NS))) for g in range(0, NS, 4)]
    for j, grp in enumerate(groups):
        a.wait_tag(*(['w%d' % s for s in grp] + (['x'] if j == 1 else [])))
        a('s_barrier')
        if j == 0:
            k.stamp(2)
        rd = []
        for i, s in enumerate(grp):
            slot = s & 31
            for c in range(4):
                rd.append('ds_read_b128 %s, v%d offset:%d' % (vr(WB + 16 * i + 4 * c, 4), 1 if slot < 16 else 2, (slot & 15) * 4096 + 1024 * c))
        for r in rd[:8]:
            a(r)
        rd = rd[8:]
        if j + 7 < len(groups):
            for s in groups[j + 7]:
                issue(s)
        if j == 1:
            for c in range(4):
                a('s_xor_b32 s52, s3, %d' % c)
                a('s_lshl_b32 s52, s52, 5')
                a('v_add_u32 v3, s52, v7')
                a('ds_read_b64 %s, v3 offset:%d' % (vr(XR + 2 * c, 2), 128 * c))
        for i, s in enumerate(grp):
            for c in range(4):
                acc = vr(ACC + 4 * c, 4)
                a('v_mfma_f32_16x16x32_bf16 %s, %s, %s, %s' % (acc, ar(4 * s, 4), vr(WB + 16 * i + 4 * c, 4), acc if s else '0'))
                if rd:
                    a(rd.pop(0))
        if j == 2:
            for c in range(4):
                for e in range(2):
                    a('v_lshlrev_b32 v%d, 16, v%d' % (40 + 4 * c + 2 * e, XR + 2 * c + e))
                    a('v_and_b32 v%d, 0xffff0000, v%d' % (41 + 4 * c + 2 * e, XR + 2 * c + e))
    k.stamp(3)
    for c in range(4):
        for e in (0, 2):
            sel = c & 1
            a('v_pk_fma_f32 %s, %s, %s, %s op_sel:[%d,0,0] op_sel_hi:[%d,1,1]' % (vr(40 + 4 * c + e, 2), vr(8 + (c & 2), 2), vr(ACC + 4 * c + e, 2), vr(40 + 4 * c + e, 2), sel, sel))
    for r in range(4):
        a('v_cvt_pk_bf16_f32 v%d, v%d, v%d' % (XR + 2 * r, 40 + r, 44 + r))
        a('v_cvt_pk_bf16_f32 v%d, v%d, v%d' % (XR + 2 * r + 1, 48 + r, 52 + r))
        a('buffer_store_dwordx2 %s, v5, %s, s51 offen offset:%d' % (vr(XR + 2 * r, 2), OUT, 1024 * r))
    k.end('s3', WS)
    a.label('k4_exit')
    a('s_endpgm')
    return dict(name='k4_kernel', grid=256, block=256, lds=K4_LDS, vgpr=128 + 172, accum=128)


def build(diag=False, opt=None):
    global DIAG, OPT
    DIAG = diag
    OPT = opt or {}
    ref = open('cdna_kernels/%s.s.ref' % NAME).read().split('\n')
    head = [l for l in ref if l.startswith(';') and '@launch' not in l and 'Override launch' not in l and 'grid=ceil' not in l
            and not l.startswith('    ')]
    a = Asm()
    infos = []
    for g in (gen_k1, gen_k2, gen_k3, gen_k4):
        a.raw('.p2align 8')
        infos.append(g(a))
    a.raw('code_end:')
    out = head
    for i in infos:
        out.append('; @launch kernel=%s grid=(%d,1,1) block=(%d,1,1) lds=%d' % (i['name'], i['grid'], i['block'], i['lds']))
    out.append('.amdgcn_target "amdgcn-amd-amdhsa--gfx950"')
    out.append('.text')
    for i in infos:
        out.append('.globl %s' % i['name'])
        out.append('.type %s,@function' % i['name'])
    out.append(a.text())
    out.append('.section .rodata,"a"')
    for i in infos:
        out.append('.p2align 6')
        out.append('.amdhsa_kernel %s' % i['name'])
        out.append('  .amdhsa_next_free_vgpr %d' % i['vgpr'])
        out.append('  .amdhsa_next_free_sgpr 102')
        out.append('  .amdhsa_accum_offset %d' % i['accum'])
        out.append('  .amdhsa_group_segment_fixed_size 0')
        out.append('  .amdhsa_kernarg_size 128')
        out.append('  .amdhsa_user_sgpr_count 2')
        out.append('  .amdhsa_user_sgpr_kernarg_segment_ptr 1')
        out.append('  .amdhsa_system_sgpr_workgroup_id_x 1')
        out.append('.end_amdhsa_kernel')
    return '\n'.join(out) + '\n'


if __name__ == '__main__':
    import argparse
    ap = argparse.ArgumentParser()
    ap.add_argument('-o', default='cdna_kernels/%s.s' % NAME)
    ap.add_argument('--diag', action='store_true')
    ap.add_argument('--opt', action='append', default=[])
    args = ap.parse_args()
    opt = dict(o.split('=', 1) for o in args.opt)
    open(args.o, 'w').write(build(args.diag, opt))
```

```python
import sys, math
from asmlib import Asm, vr, ar, sr, f2u

NAME = 'adaLN_cond__ssm_conv_s4d__glu_gated_glu__prompt'
LOG2E = 1.4426950408889634

XT = 0x000000
KX = 0x200000
X1T = 0x400000
STATS = 0x600000
MOD = 0x604000
CSB = 0x608000
CSB_STRIDE = 0x6000
WD = 0x620000
WD_STRIDE = 43 * 4096
WP = 0x780000
HH = 0xA80000
H_STRIDE = 172 * 256
WS_USED = 0x1000000
STAMPS = 0x1000000
WS_SRD = 0x1100000

DIAG = False
OPT = {}


class K:
    def __init__(self, a, idx):
        self.a, self.idx, self.nst = a, idx, 0

    def stamp(self, slot):
        if DIAG and (slot in (0, 7) or not OPT.get('light')):
            self.a('s_memrealtime s[%d:%d]' % (80 + 2 * slot, 81 + 2 * slot))
            self.a('s_waitcnt lgkmcnt(0)')

    def end(self, swave, srd, vt=0):
        a = self.a
        if DIAG:
            a('s_waitcnt vmcnt(0)')
            a('s_memtime s[98:99]')
            self.stamp(7)
            a('s_sub_u32 s98, s98, s100')
            a('s_mov_b64 exec, 1')
            a('s_lshl_b32 s96, s2, 4')
            a('s_add_u32 s96, s96, %s' % swave)
            a('s_lshl_b32 s96, s96, 6')
            a('s_add_u32 s96, s96, %d' % (STAMPS + self.idx * 256 * 16 * 64))
            a('v_mov_b32 v%d, 0' % vt)
            for i in range(8):
                a('v_mov_b32 v%d, s%d' % (vt + 1, 80 + 2 * i))
                a('buffer_store_dword v%d, v%d, %s, s96 offen offset:%d' % (vt + 1, vt, srd, 4 * i))
            a('v_mov_b32 v%d, s98' % (vt + 1))
            a('buffer_store_dword v%d, v%d, %s, s96 offen offset:32' % (vt + 1, vt, srd))
        a('s_endpgm')

    def begin(self):
        if DIAG:
            for i in range(1, 8):
                self.a('s_mov_b32 s%d, 0' % (80 + 2 * i))
            self.a('s_memtime s[100:101]')
            self.stamp(0)


def cmul(a, d, x, y, t):
    a('v_pk_mul_f32 %s, %s, %s op_sel:[0,0] op_sel_hi:[0,1]' % (vr(t, 2), vr(x, 2), vr(y, 2)))
    a('v_pk_fma_f32 %s, %s, %s, %s op_sel:[1,1,0] op_sel_hi:[1,0,1] neg_lo:[1,0,0]' % (vr(d, 2), vr(x, 2), vr(y, 2), vr(t, 2)))


K1_RS = 544
K1_CH = 64 * K1_RS
K1_GP = 2 * K1_CH
K1_CNT = K1_GP + 256
K1_LDS = K1_CNT + 64


def gen_k1(a):
    k = K(a, 0)
    WS = 's[36:39]'
    a.label('k1_kernel')
    a('s_cmp_ge_u32 s2, 256')
    a('s_cbranch_scc1 k1_exit')
    k.begin()
    a('s_load_dwordx16 s[4:19], s[0:1], 0')
    a('s_load_dwordx4 s[24:27], s[0:1], 88')
    a('s_load_dwordx2 s[36:37], s[0:1], 120')
    a('v_lshrrev_b32 v1, 6, v0')
    a('v_and_b32 v0, 63, v0')
    a('v_readfirstlane_b32 s3, v1')
    a('s_mov_b32 s38, %d' % WS_SRD)
    a('s_mov_b32 s39, 0x20000')
    a('s_and_b32 s40, s2, 7')
    a('s_lshr_b32 s41, s2, 3')
    a('s_lshl_b32 s42, s40, 5')
    a('s_add_u32 s42, s42, s41')
    a('s_cmp_ge_u32 s3, 8')
    a('s_cbranch_scc1 k1_notkg')
    a('s_and_b32 s43, s3, 3')
    a('s_lshl_b32 s44, s42, 9')
    a('s_lshl_b32 s45, s43, 7')
    a('s_add_u32 s44, s44, s45')
    a('v_lshl_add_u32 v1, v0, 1, s44')
    a('s_lshr_b32 s45, s43, 1')
    a('s_lshl_b32 s46, s42, 1')
    a('s_add_u32 s46, s46, s45')
    a('s_lshl_b32 s47, s46, 1')
    a('v_mov_b32 v2, s47')
    for r in range(4, 10):
        a('v_mov_b32 v%d, 0' % r)
    a('global_load_short_d16_hi v4, v2, s[14:15]')
    a('global_load_short_d16_hi v5, v1, s[6:7]')
    a('global_load_short_d16_hi v6, v1, s[8:9]')
    a('global_load_short_d16_hi v8, v1, s[10:11]')
    a('global_load_short_d16_hi v9, v1, s[12:13]')
    a('global_load_short_d16_hi v7, v2, s[16:17]')
    a('s_barrier')
    a('s_branch k1_kg')
    a.label('k1_notkg')
    a('s_cmp_ge_u32 s3, 12')
    a('s_cbranch_scc1 k1_notg')
    a('s_cmp_ge_u32 s41, 24')
    a('s_cbranch_scc1 k1_exit')
    a('s_mul_i32 s44, s40, 24')
    a('s_add_u32 s44, s44, s41')
    a('s_and_b32 s43, s3, 3')
    a('v_lshrrev_b32 v1, 1, v0')
    a('v_lshlrev_b32 v1, 2, v1')
    a('s_lshl_b32 s45, s43, 7')
    a('v_add_u32 v1, s45, v1')
    a('v_lshlrev_b32 v2, 1, v1')
    a('v_mul_u32_u24 v1, 6144, v1')
    a('v_and_b32 v3, 1, v0')
    a('v_lshl_add_u32 v1, v3, 4, v1')
    a('s_lshl_b32 s45, s44, 5')
    a('s_add_u32 s45, s45, 3072')
    a('v_add_u32 v1, s45, v1')
    a('v_add_u32 v3, 12288, v1')
    a('global_load_dwordx2 v[4:5], v2, s[24:25]')
    a('global_load_dwordx4 v[8:11], v1, s[26:27] offset:-3072')
    a('global_load_dwordx4 v[12:15], v1, s[26:27] offset:3072')
    a('global_load_dwordx4 v[16:19], v3, s[26:27] offset:-3072')
    a('global_load_dwordx4 v[20:23], v3, s[26:27] offset:3072')
    a('s_barrier')
    a('s_branch k1_g')
    a.label('k1_notg')
    a('s_cmp_eq_u32 s3, 13')
    a('s_cbranch_scc1 k1_sload')
    a('s_cmp_eq_u32 s3, 14')
    a('s_cbranch_scc1 k1_pf')
    a('s_lshr_b32 s44, s42, 2')
    a('s_and_b32 s45, s42, 3')
    a('v_and_b32 v2, 3, v0')
    a('v_lshrrev_b32 v3, 2, v0')
    a('v_lshlrev_b32 v1, 13, v2')
    a('v_lshl_add_u32 v1, v3, 4, v1')
    a('s_lshl_b32 s46, s44, 15')
    a('s_lshl_b32 s47, s45, 8')
    a('s_add_u32 s46, s46, s47')
    a('s_add_u32 s46, s46, 4096')
    a('v_add_u32 v1, s46, v1')
    for r in range(8):
        a('global_load_dwordx4 %s, v1, s[4:5] offset:%d' % (vr(8 + 4 * r, 4), 1024 * r - 4096))
    a('s_barrier')
    a('s_branch k1_t')
    a.label('k1_sload')
    a('v_lshrrev_b32 v2, 3, v0')
    a('v_and_b32 v3, 7, v0')
    a('v_lshlrev_b32 v1, 10, v2')
    a('v_lshl_add_u32 v1, v3, 4, v1')
    a('s_lshl_b32 s44, s42, 13')
    a('v_add_u32 v1, s44, v1')
    for r in range(8):
        a('global_load_dwordx4 %s, v1, s[4:5] offset:%d' % (vr(8 + 4 * r, 4), 128 * r))
    a('s_barrier')
    a('s_branch k1_s')
    a.label('k1_pf')
    a('s_getpc_b64 s[48:49]')
    a.label('k1_pcref')
    a('v_mov_b32 v1, %d' % K1_CNT)
    a('v_mov_b32 v4, 0')
    a('v_mov_b32 v5, 0')
    a('v_mov_b32 v6, 0')
    a('v_mov_b32 v7, 0')
    a('ds_write_b128 v1, v[4:7]')
    a('s_mov_b32 s50, code_end-k1_pcref')
    a('s_mov_b32 s51, 0x20000')
    a('v_lshlrev_b32 v2, 4, v0')
    a('s_lshl_b32 s44, s41, 10')
    a('s_add_u32 s44, s44, k2_kernel-k1_pcref')
    a('s_movk_i32 s45, 2048')
    for i in range(5):
        a('buffer_load_dwordx4 v[8:11], v2, s[48:51], %s offen offset:%d' % (('0', i * 1024) if i < 3 else ('s45', i * 1024 - 2048)), tag='pf')
        a.st['vm'].clear()
    a('buffer_load_dwordx4 v[8:11], v2, s[48:51], s44 offen', tag='pf')
    a('s_waitcnt lgkmcnt(0)')
    a('s_barrier')
    k.end('s3', WS)

    a.label('k1_kg')
    a('s_mov_b32 s48, %s' % f2u(LOG2E))
    a('s_and_b32 s47, s3, 1')
    a('s_mul_i32 s49, s45, %d' % K1_CH)
    a('s_lshl_b32 s50, s47, 8')
    a('s_add_u32 s50, s50, s49')
    a('v_lshl_add_u32 v3, v0, 2, s50')
    a('s_lshr_b32 s51, s3, 2')
    a('s_lshl_b32 s51, s51, 1')
    a('s_add_u32 s51, s51, s47')
    a('s_lshl_b32 s52, s51, 3')
    a('s_lshr_b32 s53, 0x33292010, s52')
    a('s_and_b32 s53, s53, 0xff')
    a('s_lshr_b32 s54, 0x03020204, s52')
    a('s_and_b32 s54, s54, 0xff')
    a('s_cmp_eq_u32 s51, 2')
    a('s_cselect_b32 s55, 1, 0')
    a('v_bfe_u32 v10, v0, 2, 2')
    a('v_and_b32 v11, 3, v0')
    a('v_mad_u32_u24 v11, v10, s54, v11')
    a('v_lshrrev_b32 v10, 1, v10')
    a('v_mad_u32_u24 v11, v10, s55, v11')
    a('v_add_u32 v11, s53, v11')
    a('v_lshrrev_b32 v12, 4, v0')
    a('v_lshlrev_b32 v13, 4, v12')
    a('v_add_u32 v13, s49, v13')
    a('s_movk_i32 s56, %d' % K1_RS)
    a('v_mad_u32_u24 v40, v11, s56, v13')
    a('v_and_b32 v10, 15, v0')
    a('v_mad_u32_u24 v41, v10, s56, v13')
    a('v_lshlrev_b32 v42, 5, v10')
    k.stamp(1)
    a('v_mul_f32 v4, s48, v4')
    a('v_mul_f32 v5, s48, v5')
    a('v_exp_f32 v4, v4')
    a('v_exp_f32 v5, v5')
    a('v_cvt_pk_bf16_f32 v5, v4, v5')
    a('v_lshlrev_b32 v4, 16, v5')
    a('v_and_b32 v5, 0xffff0000, v5')
    a('v_mul_f32 v5, v5, v4')
    a('v_mul_f32 v6, v6, v4')
    a('v_mul_f32 v5, %s, v5' % f2u(-LOG2E))
    a('v_mul_f32 v6, 0.15915494, v6')
    k.stamp(2)

    def direct2(d0, p0, d1, p1):
        for d, p in ((d0, p0), (d1, p1)):
            a('v_mul_f32 v%d, %s, v5' % (d + 2, f2u(p)))
            a('v_mul_f32 v%d, %s, v6' % (d + 3, f2u(p)))
        for d in (d0, d1):
            a('v_exp_f32 v%d, v%d' % (d + 2, d + 2))
            a('v_fract_f32 v%d, v%d' % (d + 3, d + 3))
        for d in (d0, d1):
            a('v_cos_f32 v%d, v%d' % (d, d + 3))
            a('v_sin_f32 v%d, v%d' % (d + 1, d + 3))
        for d in (d0, d1):
            a('v_pk_mul_f32 %s, %s, %s op_sel_hi:[1,0]' % (vr(d, 2), vr(d, 2), vr(d + 2, 2)))
    pk = [0]

    def put(row, src, conj=False):
        t = 36 + pk[0] % 4
        pk[0] += 1
        a('v_cvt_pk_bf16_f32 v%d, v%d, %sv%d' % (t, src, '-' if conj else '', src + 1))
        a('ds_write_b32 v3, v%d offset:%d' % (t, row * K1_RS))
    a('s_cmp_ge_u32 s3, 4')
    a('s_cbranch_scc1 k1_set1')
    direct2(12, 1.0, 16, 16.0)
    a('v_add_f32 v4, v4, v4')
    a('v_pk_mul_f32 v[8:9], v[8:9], v[4:5] op_sel_hi:[1,0]')
    a('v_mov_b32 v35, 0x3f80')
    a('ds_write_b32 v3, v35 offset:%d' % (16 * K1_RS))
    put(0, 8, True)
    put(17, 12)
    cmul(a, 8, 8, 16, 24)
    cmul(a, 20, 12, 12, 26)
    put(1, 8, True)
    put(18, 20)
    for i in range(2, 16):
        cmul(a, 8, 8, 16, 24)
        if i < 15:
            cmul(a, 20, 20, 12, 26)
        put(i, 8, True)
        if i < 15:
            put(17 + i, 20)
    a('s_branch k1_tabdone')
    a.label('k1_set1')
    direct2(12, 2.0, 16, 256.0)
    cmul(a, 14, 12, 12, 24)
    cmul(a, 20, 16, 16, 26)
    put(32, 16)
    cmul(a, 22, 16, 12, 24)
    cmul(a, 18, 14, 14, 26)
    put(41, 20)
    put(33, 22)
    seqB = []
    seqB.append((28, 20, 14, 42))
    for r in (43, 44, 45):
        seqB.append((28, 28, 14, r))
    seqB.append((20, 20, 16, 46))
    seqB.append((28, 20, 14, 47))
    for r in (48, 49, 50):
        seqB.append((28, 28, 14, r))
    seqA = [(22, 22, 12, r) for r in range(34, 41)]
    for i in range(max(len(seqA), len(seqB))):
        todo = []
        if i < len(seqA):
            todo.append(seqA[i] + (24,))
        if i < len(seqB):
            todo.append(seqB[i] + (26,))
        for d, x, y, r, t in todo:
            cmul(a, d, x, y, t)
        for d, x, y, r, t in todo:
            put(r, d)
    cmul(a, 30, 18, 18, 24)
    cmul(a, 20, 20, 16, 26)
    for tau in range(4):
        cmul(a, 22, 20, 18, 24)
        cmul(a, 28, 20, 30, 26)
        put(51 + 3 * tau, 20)
        if tau < 3:
            cmul(a, 20, 20, 16, 32)
        put(52 + 3 * tau, 22)
        put(53 + 3 * tau, 28)
    a.label('k1_tabdone')
    a('s_lshl_b32 s57, s45, 2')
    a('s_add_u32 s57, s57, %d' % K1_CNT)
    a('v_mov_b32 v10, s57')
    a('v_mov_b32 v11, 1')
    a('s_waitcnt lgkmcnt(0)')
    k.stamp(3)
    a('s_mov_b64 exec, 1')
    a('ds_add_u32 v10, v11')
    a.label('k1_spin')
    a('ds_read_b32 v11, v10')
    a('s_waitcnt lgkmcnt(0)')
    a('v_readfirstlane_b32 s58, v11')
    a('s_cmp_lt_u32 s58, 4')
    a('s_cbranch_scc1 k1_spin')
    a('s_mov_b64 exec, -1')
    k.stamp(4)
    for ks in range(8):
        a('ds_read_b128 %s, v40 offset:%d' % (vr(48 + 8 * ks, 4), 64 * ks))
        a('ds_read_b128 %s, v41 offset:%d' % (vr(52 + 8 * ks, 4), 64 * ks))
    a('s_lshl_b32 s57, s46, 12')
    a('s_add_u32 s57, s57, %d' % KX)
    a('v_lshrrev_b32 v12, 4, v0')
    for ks in range(8):
        a('v_mfma_f32_16x16x32_bf16 v[44:47], %s, %s, %s' % (vr(48 + 8 * ks, 4), vr(52 + 8 * ks, 4), 'v[44:47]' if ks else '0'))
    a('s_cmp_ge_u32 s51, 2')
    a('s_cbranch_scc1 k1_seg23')
    a('v_lshl_add_u32 v42, v12, 3, v42')
    a('s_cmp_eq_u32 s51, 1')
    a('s_cbranch_scc1 k1_seg1')
    a('v_cmp_eq_u32 vcc, 0, v0')
    a('v_cndmask_b32 v7, 0, v7, vcc')
    a('v_add_f32 v44, v44, v7')
    a('v_cvt_pk_bf16_f32 v44, v44, v45')
    a('v_cvt_pk_bf16_f32 v45, v46, v47')
    a('buffer_store_dwordx2 v[44:45], v42, %s, s57 offen' % WS)
    k.end('s3', WS)
    a.label('k1_seg1')
    a('v_cvt_pk_bf16_f32 v44, v44, v44')
    a('v_cvt_pk_bf16_f32 v45, v45, v46')
    a('buffer_store_dwordx2 v[44:45], v42, %s, s57 offen offset:512' % WS)
    k.end('s3', WS)
    a.label('k1_seg23')
    a('s_cmp_eq_u32 s51, 3')
    a('s_cbranch_scc1 k1_seg3')
    a('v_lshrrev_b32 v13, 1, v12')
    a('v_lshl_add_u32 v42, v13, 9, v42')
    a('v_and_b32 v13, 1, v12')
    a('v_lshl_add_u32 v42, v13, 4, v42')
    a('v_cvt_pk_bf16_f32 v48, v44, v44')
    a('v_cvt_pk_bf16_f32 v49, v44, v45')
    a('v_cvt_pk_bf16_f32 v50, v45, v45')
    a('v_cvt_pk_bf16_f32 v51, v46, v46')
    a('buffer_store_dwordx4 v[48:51], v42, %s, s57 offen offset:1024' % WS)
    k.end('s3', WS)
    a.label('k1_seg3')
    a('v_lshl_add_u32 v42, v12, 9, v42')
    a('v_cvt_pk_bf16_f32 v48, v44, v44')
    a('v_cvt_pk_bf16_f32 v49, v44, v44')
    a('v_cvt_pk_bf16_f32 v50, v44, v45')
    a('v_cvt_pk_bf16_f32 v51, v45, v45')
    a('v_cvt_pk_bf16_f32 v52, v45, v45')
    a('v_cvt_pk_bf16_f32 v53, v45, v45')
    a('v_cvt_pk_bf16_f32 v54, v46, v46')
    a('v_cvt_pk_bf16_f32 v55, v46, v46')
    a('buffer_store_dwordx4 v[48:51], v42, %s, s57 offen offset:2048' % WS)
    a('buffer_store_dwordx4 v[52:55], v42, %s, s57 offen offset:2064' % WS)
    k.end('s3', WS)

    a.label('k1_g')
    a('s_mov_b32 s48, %s' % f2u(-LOG2E))
    a('s_mov_b32 s49, 0x05040100')
    a('s_mov_b32 s50, 0x07060302')
    for r in range(32, 40):
        a('v_mov_b32 v%d, 0' % r)
    k.stamp(1)
    a('v_lshlrev_b32 v24, 16, v4')
    a('v_and_b32 v25, 0xffff0000, v4')
    a('v_lshlrev_b32 v26, 16, v5')
    a('v_and_b32 v27, 0xffff0000, v5')
    for r in range(4):
        a('v_mul_f32 v%d, s48, v%d' % (28 + r, 24 + r))
    for r in range(4):
        a('v_exp_f32 v%d, v%d' % (28 + r, 28 + r))
    for r in range(4):
        a('v_add_f32 v%d, 1.0, v%d' % (28 + r, 28 + r))
    for r in range(4):
        a('v_min_f32 v%d, 0x7f000000, v%d' % (28 + r, 28 + r))
    for r in range(4):
        a('v_rcp_f32 v%d, v%d' % (40 + r, 28 + r))
    for r in range(4):
        a('v_mul_f32 v%d, v%d, v%d' % (44 + r, 24 + r, 40 + r))
    for r in range(4):
        a('v_fma_f32 v%d, -v%d, v%d, v%d' % (24 + r, 44 + r, 28 + r, 24 + r))
    for r in range(4):
        a('v_fmac_f32 v%d, v%d, v%d' % (44 + r, 24 + r, 40 + r))
    a('v_cvt_pk_bf16_f32 v4, v44, v45')
    a('v_cvt_pk_bf16_f32 v5, v46, v47')
    for jp in range(2):
        lo, hi = 8 + 8 * jp, 12 + 8 * jp
        for q in range(4):
            a('v_perm_b32 v%d, v%d, v%d, s49' % (24 + 2 * q, hi + q, lo + q))
            a('v_perm_b32 v%d, v%d, v%d, s50' % (25 + 2 * q, hi + q, lo + q))
        for q in range(8):
            a('v_dot2c_f32_bf16 v%d, v%d, v%d' % (32 + q, 24 + q, 4 + jp))
    k.stamp(2)
    for q in range(4):
        a('v_permlane32_swap_b32 v%d, v%d' % (32 + q, 36 + q))
    for q in range(4):
        a('v_add_f32 v%d, v%d, v%d' % (32 + q, 32 + q, 36 + q))
    a('v_permlane16_swap_b32 v32, v34')
    a('v_permlane16_swap_b32 v33, v35')
    a('v_add_f32 v32, v32, v34')
    a('v_add_f32 v33, v33, v35')
    for sh in (8, 4, 2):
        a('v_add_f32_dpp v32, v32, v32 row_ror:%d row_mask:0xf bank_mask:0xf' % sh)
        a('v_add_f32_dpp v33, v33, v33 row_ror:%d row_mask:0xf bank_mask:0xf' % sh)
    a('v_and_b32 v1, 1, v0')
    a('v_lshrrev_b32 v2, 4, v0')
    a('v_lshlrev_b32 v1, 5, v1')
    a('v_lshl_add_u32 v1, v2, 3, v1')
    a('s_lshl_b32 s51, s43, 6')
    a('s_add_u32 s51, s51, %d' % K1_GP)
    a('v_add_u32 v1, s51, v1')
    a('ds_write_b64 v1, v[32:33]')
    a('v_mov_b32 v10, %d' % (K1_CNT + 8))
    a('v_mov_b32 v11, 1')
    a('s_waitcnt lgkmcnt(0)')
    a('s_mov_b64 exec, 1')
    a('ds_add_rtn_u32 v11, v10, v11')
    a('v_readfirstlane_b32 s52, v11')
    a('s_cmp_lg_u32 s52, 3')
    a('s_cbranch_scc1 k1_gend')
    a('s_mov_b64 exec, 0xffff')
    a('v_lshlrev_b32 v1, 2, v0')
    a('v_add_u32 v2, %d, v1' % K1_GP)
    a('ds_read2_b32 v[4:5], v2 offset0:0 offset1:16')
    a('ds_read2_b32 v[6:7], v2 offset0:32 offset1:48')
    a('s_lshr_b32 s53, s44, 5')
    a('s_cmp_eq_u32 s53, 1')
    a('s_cselect_b32 s54, 1.0, 0')
    a('s_cmp_eq_u32 s53, 4')
    a('s_cselect_b32 s54, 1.0, s54')
    a('s_lshl_b32 s55, s44, 6')
    a('s_add_u32 s55, s55, %d' % MOD)
    a('v_add_f32 v4, v4, v5')
    a('v_add_f32 v6, v6, v7')
    a('v_add_f32 v4, v4, v6')
    a('v_cvt_pk_bf16_f32 v4, v4, v4')
    a('v_lshlrev_b32 v4, 16, v4')
    a('v_add_f32 v4, s54, v4')
    a('v_cvt_pk_bf16_f32 v4, v4, v4')
    a('v_lshlrev_b32 v4, 16, v4')
    a('buffer_store_dword v4, v1, %s, s55 offen' % WS)
    a.label('k1_gend')
    k.end('s3', WS)

    a.label('k1_t')
    a('s_mov_b32 s49, 0x05040100')
    a('s_mov_b32 s50, 0x07060302')
    a('v_lshlrev_b32 v1, 15, v3')
    a('v_lshl_add_u32 v1, v2, 4, v1')
    a('s_lshl_b32 s46, s45, 19')
    a('s_lshl_b32 s47, s44, 7')
    a('s_add_u32 s46, s46, s47')
    a('s_add_u32 s46, s46, %d' % XT)
    k.stamp(1)
    for q in range(4):
        for e in range(2):
            o = 40 + 8 * q + 4 * e
            for j in range(4):
                a('v_perm_b32 v%d, v%d, v%d, %s' % (o + j, 8 + 4 * (2 * j + 1) + q, 8 + 4 * (2 * j) + q, 's50' if e else 's49'))
            a('buffer_store_dwordx4 %s, v1, %s, s46 offen offset:%d' % (vr(o, 4), WS, 64 * e))
        if q < 3:
            a('s_add_u32 s46, s46, 8192')
    k.end('s3', WS)

    a.label('k1_s')
    a('s_mov_b32 s48, 0x3f803f80')
    for r in range(4, 8):
        a('v_mov_b32 v%d, 0' % r)
    a('v_lshrrev_b32 v1, 1, v2')
    a('v_lshlrev_b32 v1, 12, v1')
    a('v_and_b32 v2, 1, v2')
    a('v_lshl_add_u32 v1, v2, 3, v1')
    a('s_lshl_b32 s44, s42, 4')
    a('s_add_u32 s44, s44, %d' % STATS)
    k.stamp(1)
    for r in range(32):
        a('v_dot2c_f32_bf16 v%d, s48, v%d' % (4 + 2 * (r & 1), 8 + r))
        a('v_dot2c_f32_bf16 v%d, v%d, v%d' % (5 + 2 * (r & 1), 8 + r, 8 + r))
    a('v_add_f32 v4, v4, v6')
    a('v_add_f32 v5, v5, v7')
    for m in ('quad_perm:[1,0,3,2]', 'quad_perm:[2,3,0,1]', 'row_half_mirror'):
        a('v_add_f32_dpp v4, v4, v4 %s row_mask:0xf bank_mask:0xf' % m)
        a('v_add_f32_dpp v5, v5, v5 %s row_mask:0xf bank_mask:0xf' % m)
    a('v_mul_f32 v4, %s, v4' % f2u(1 / 512))
    a('v_mul_f32 v5, %s, v5' % f2u(1 / 512))
    a('v_fma_f32 v5, -v4, v4, v5')
    a('v_max_f32 v5, 0, v5')
    a('v_cvt_pk_bf16_f32 v5, v4, v5')
    a('v_lshlrev_b32 v4, 16, v5')
    a('v_and_b32 v5, 0xffff0000, v5')
    a('v_add_f32 v5, %s, v5' % f2u(1e-5))
    a('v_cvt_pk_bf16_f32 v5, v5, v5')
    a('v_lshlrev_b32 v5, 16, v5')
    a('v_sqrt_f32 v5, v5')
    a('v_cvt_pk_bf16_f32 v5, v5, v5')
    a('v_lshlrev_b32 v5, 16, v5')
    a('v_rcp_f32 v6, v5')
    a('v_cmp_eq_u32 vcc, 0, v3')
    a('v_mul_f32 v7, -v4, v6')
    a('s_and_b64 exec, exec, vcc')
    a('buffer_store_dwordx2 v[6:7], v1, %s, s44 offen' % WS)
    k.end('s3', WS)
    a.label('k1_exit')
    a('s_endpgm')
    return dict(name='k1_kernel', grid=256, block=960, lds=K1_LDS, vgpr=112, accum=112)


K2_CS = 4160
K2_KCH = 4 * K2_CS
K2_HB = 2 * K2_KCH
K2_HCH = 4608
K2_RED = K2_HB + 2 * K2_HCH
K2_SP = K2_RED + 16384
K2_LDS = K2_SP + 2048


def gen_k2(a):
    k = K(a, 1)
    WS = 's[36:39]'
    a.label('k2_kernel')
    a('s_cmp_ge_u32 s2, 256')
    a('s_cbranch_scc1 k2_exit')
    k.begin()
    a('s_load_dwordx2 s[36:37], s[0:1], 120')
    a('s_load_dwordx4 s[20:23], s[0:1], 64')
    a('s_load_dwordx2 s[24:25], s[0:1], 80')
    a('v_lshrrev_b32 v1, 6, v0')
    a('v_and_b32 v2, 255, v0')
    a('v_readfirstlane_b32 s3, v1')
    a('v_and_b32 v0, 63, v0')
    a('s_mov_b32 s38, %d' % WS_SRD)
    a('s_mov_b32 s39, 0x20000')
    a('s_and_b32 s40, s2, 7')
    a('s_lshr_b32 s41, s2, 3')
    a('s_lshl_b32 s42, s40, 5')
    a('s_add_u32 s42, s42, s41')
    a('s_lshl_b32 s43, s42, 13')
    a('v_lshlrev_b32 v3, 4, v2')
    a('v_and_b32 v4, 15, v0')
    a('v_lshrrev_b32 v5, 4, v0')
    a('s_cmp_ge_u32 s3, 4')
    a('s_cbranch_scc1 k2_side')
    a('v_lshrrev_b32 v6, 2, v2')
    a('v_and_b32 v7, 3, v2')
    a('v_lshlrev_b32 v6, 7, v6')
    a('v_lshl_add_u32 v6, v7, 4, v6')
    a('s_add_u32 s44, s43, %d' % XT)
    a('s_mov_b32 s45, %d' % STATS)
    a('s_mov_b32 s46, %d' % (STATS + 4096))
    a('s_mov_b32 s47, %d' % (STATS + 8192))
    a('s_mov_b32 s48, %d' % (STATS + 12288))
    a('s_lshl_b32 s49, s42, 3')
    a('s_add_u32 s49, s49, %d' % MOD)
    a('s_lshr_b32 s50, s3, 1')
    a('s_and_b32 s51, s3, 1')
    a('s_waitcnt lgkmcnt(0)')
    a('buffer_load_dwordx4 v[16:19], v6, %s, s44 offen' % WS)
    a('buffer_load_dwordx4 v[20:23], v6, %s, s44 offen offset:64' % WS)
    for j in range(4):
        a('buffer_load_dwordx4 %s, v3, %s, s%d offen' % (vr(24 + 4 * j, 4), WS, 45 + j))
    a('s_buffer_load_dwordx2 s[52:53], %s, s49' % WS)
    a('s_add_u32 s58, s49, 2048')
    a('s_buffer_load_dwordx2 s[54:55], %s, s58' % WS)
    a('s_add_u32 s59, s49, 4096')
    a('s_buffer_load_dwordx2 s[56:57], %s, s59' % WS)
    a('v_lshrrev_b32 v6, 1, v4')
    a('v_lshlrev_b32 v6, 7, v6')
    a('v_and_b32 v7, 1, v4')
    a('v_lshl_add_u32 v6, v7, 5, v6')
    a('v_lshl_add_u32 v6, v5, 3, v6')
    a('s_lshl_b32 s60, s50, 6')
    a('s_lshl_b32 s61, s51, 10')
    a('s_add_u32 s60, s60, s61')
    a('s_add_u32 s60, s60, s44')
    a('s_add_u32 s61, s60, 4096')
    for kk in range(4):
        a('buffer_load_dwordx2 %s, v6, %s, s%d offen offset:%d' % (vr(8 + 2 * kk, 2), WS, 60 + kk // 2, 2048 * (kk & 1)))
    a('v_lshrrev_b32 v6, 5, v0')
    a('v_mul_u32_u24 v6, %d, v6' % K2_HCH)
    a('v_and_b32 v7, 31, v0')
    a('v_lshl_add_u32 v6, v7, 4, v6')
    for r in range(40, 44):
        a('v_mov_b32 v%d, 0' % r)
    a('ds_write_b128 v6, v[40:43] offset:%d' % K2_HB)
    a('v_and_b32 v6, 3, v4')
    a('v_sub_u32 v6, 3, v6')
    a('v_mul_u32_u24 v6, %d, v6' % K2_CS)
    a('v_lshrrev_b32 v7, 2, v4')
    a('v_lshl_add_u32 v6, v7, 3, v6')
    a('v_lshlrev_b32 v7, 4, v5')
    a('v_sub_u32 v6, v6, v7')
    a('s_mul_i32 s62, s50, %d' % K2_KCH)
    a('s_lshl_b32 s63, s51, 8')
    a('s_add_u32 s62, s62, s63')
    a('s_add_u32 s62, s62, 56')
    a('v_add_u32 v1, s62, v6')
    a('v_lshl_add_u32 v6, v4, 5, v7')
    a('s_mul_i32 s62, s50, %d' % K2_HCH)
    a('s_sub_u32 s62, s62, s63')
    a('s_add_u32 s62, s62, %d' % (K2_HB + 480 - 192))
    a('v_add_u32 v2, s62, v6')
    a('s_lshl_b32 s62, s42, 1')
    a('s_add_u32 s62, s62, s50')
    a('s_and_b32 s63, s62, 7')
    a('v_and_b32 v6, 7, v4')
    a('v_xor_b32 v6, s63, v6')
    a('v_lshlrev_b32 v6, 5, v6')
    a('v_lshl_add_u32 v6, v5, 3, v6')
    a('v_lshrrev_b32 v7, 3, v4')
    a('v_lshl_add_u32 v4, v7, 17, v6')
    a('s_lshl_b32 s62, s62, 8')
    a('s_lshl_b32 s63, s51, 18')
    a('s_add_u32 s62, s62, s63')
    a('s_add_u32 s62, s62, %d' % X1T)
    a('v_lshlrev_b32 v5, 4, v0')
    a('s_lshl_b32 s63, s3, 12')
    a('s_add_u32 s63, s63, %d' % K2_RED)
    a('v_add_u32 v6, s63, v5')
    a('s_xor_b32 s64, s3, 1')
    a('s_lshl_b32 s64, s64, 12')
    a('s_add_u32 s64, s64, %d' % K2_RED)
    a('v_add_u32 v7, s64, v5')
    a('s_waitcnt lgkmcnt(0)')
    a('v_mov_b32 v40, s52')
    a('v_mov_b32 v41, s53')
    a('s_cmp_eq_u32 s50, 0')
    a('s_cselect_b32 s56, s56, s57')
    k.stamp(1)
    for q in range(4):
        a('v_lshlrev_b32 v%d, 16, v%d' % (44 + 4 * q, 16 + q))
        a('v_lshlrev_b32 v%d, 16, v%d' % (45 + 4 * q, 20 + q))
        a('v_and_b32 v%d, 0xffff0000, v%d' % (46 + 4 * q, 16 + q))
        a('v_and_b32 v%d, 0xffff0000, v%d' % (47 + 4 * q, 20 + q))
    for t in range(8):
        p = vr(44 + 2 * t, 2)
        s = vr(24 + 2 * t, 2)
        a('v_pk_fma_f32 %s, %s, %s, %s op_sel:[0,0,1] op_sel_hi:[1,0,1]' % (p, p, s, s))
    for t in range(8):
        p = vr(44 + 2 * t, 2)
        a('v_pk_fma_f32 %s, %s, s[54:55], v[40:41]' % (p, p))
    for ch in range(2):
        for q in range(4):
            a('v_cvt_pk_bf16_f32 v%d, v%d, v%d' % (16 + 4 * ch + q, 44 + 2 * (7 - 2 * q) + ch, 44 + 2 * (6 - 2 * q) + ch))
        a('ds_write_b128 v3, %s offset:%d' % (vr(16 + 4 * ch, 4), K2_HB + 512 + ch * K2_HCH))
    a('s_waitcnt lgkmcnt(0)')
    k.stamp(2)
    a('s_barrier')
    k.stamp(3)
    ACC = 16

    def reads(j):
        base = 48 + 64 * (j & 1)
        out = []
        for n in range(8):
            out.append('ds_read_b64 %s, v1 offset:%d' % (vr(base + 8 * n, 2), 64 * j + 512 * n))
            out.append('ds_read_b64 %s, v1 offset:%d' % (vr(base + 8 * n + 2, 2), 64 * j + 512 * n + 8))
            out.append('ds_read_b128 %s, v2 offset:%d' % (vr(base + 8 * n + 4, 4), 64 * (3 - j) + 512 * n))
        return out
    pairs = []
    for n in range(8):
        lo = min(n, 7 - n)
        for o in range(lo + 1):
            pairs.append((n, o))
            if o != n:
                pairs.append((o, n))
    assert len(pairs) == 36
    first = reads(0)
    for r in first[:12]:
        a(r)
    queue = first[12:]
    seen = set()
    for j in range(4):
        if j < 3:
            queue += reads(j + 1)
        base = 48 + 64 * (j & 1)
        for i, (dl, tp) in enumerate(pairs):
            tau = dl + tp
            acc = vr(ACC + 4 * tau, 4)
            a('v_mfma_f32_16x16x32_bf16 %s, %s, %s, %s' % (acc, vr(base + 8 * dl, 4), vr(base + 8 * tp + 4, 4), acc if tau in seen else '0'))
            seen.add(tau)
            n_issue = 1 if (j == 0 or i % 3 != 2) else 0
            for _ in range(n_issue):
                if queue:
                    a(queue.pop(0))
        assert not queue
    k.stamp(4)
    a('s_cmp_eq_u32 s51, 1')
    a('s_cbranch_scc1 k2_tail1')
    for half in range(2):
        if half:
            a.label('k2_tail1')
        for kk in range(4):
            a('ds_write_b128 v6, %s offset:%d' % (vr(ACC + 4 * (2 * kk + 1 - half), 4), 1024 * kk))
        for kk in range(4):
            a('v_lshlrev_b32 v%d, 16, v%d' % (64 + 4 * kk, 8 + 2 * kk))
            a('v_and_b32 v%d, 0xffff0000, v%d' % (65 + 4 * kk, 8 + 2 * kk))
            a('v_lshlrev_b32 v%d, 16, v%d' % (66 + 4 * kk, 9 + 2 * kk))
            a('v_and_b32 v%d, 0xffff0000, v%d' % (67 + 4 * kk, 9 + 2 * kk))
        a('s_waitcnt lgkmcnt(0)')
        a('s_barrier')
        for kk in range(4):
            a('ds_read_b128 %s, v7 offset:%d' % (vr(48 + 4 * kk, 4), 1024 * kk))
        for kk in range(4):
            own = ACC + 4 * (2 * kk + half)
            for e in (0, 2):
                a('v_pk_fma_f32 %s, %s, s[56:57], %s op_sel_hi:[1,0,1]' % (vr(64 + 4 * kk + e, 2), vr(own + e, 2), vr(64 + 4 * kk + e, 2)))
        for kk in range(4):
            for e in (0, 2):
                a('v_pk_fma_f32 %s, %s, s[56:57], %s op_sel_hi:[1,0,1]' % (vr(64 + 4 * kk + e, 2), vr(48 + 4 * kk + e, 2), vr(64 + 4 * kk + e, 2)))
            a('v_cvt_pk_bf16_f32 v%d, v%d, v%d' % (8 + 2 * kk, 64 + 4 * kk, 65 + 4 * kk))
            a('v_cvt_pk_bf16_f32 v%d, v%d, v%d' % (9 + 2 * kk, 66 + 4 * kk, 67 + 4 * kk))
            a('buffer_store_dwordx2 %s, v4, %s, s62 offen' % (vr(8 + 2 * kk, 2), WS))
            if kk < 3:
                a('s_add_u32 s62, s62, 524288')
        k.end('s3', WS)

    a.label('k2_side')
    a('s_add_u32 s44, s43, %d' % (KX - 8))
    a('s_add_u32 s45, s44, 4096')
    a('s_and_b32 s46, s3, 3')
    a('s_waitcnt lgkmcnt(0)')
    for ch in range(2):
        a('buffer_load_dwordx4 %s, v3, %s, s%d offen offset:8' % (vr(12 + 8 * ch, 4), WS, 44 + ch))
        a('buffer_load_dwordx2 %s, v3, %s, s%d offen' % (vr(8 + 8 * ch, 2), WS, 44 + ch))
    a('s_cmp_ge_u32 s42, 172')
    a('s_cbranch_scc1 k2_wdload')
    a('s_lshr_b32 s47, s42, 2')
    a('s_and_b32 s48, s42, 3')
    a('s_lshl_b32 s49, s48, 2')
    a('s_add_u32 s49, s49, s46')
    a('s_lshl_b32 s50, s49, 5')
    a('v_lshlrev_b32 v6, 2, v5')
    a('v_add_u32 v6, s50, v6')
    a('v_lshlrev_b32 v7, 2, v6')
    a('v_mul_u32_u24 v6, 2752, v6')
    a('v_lshl_add_u32 v6, v4, 2, v6')
    a('s_lshl_b32 s51, s47, 6')
    a('s_add_u32 s51, s51, 1376')
    a('v_add_u32 v24, s51, v6')
    a('v_add_u32 v25, %d, v24' % (2 * 2752))
    a('v_add_u32 v26, %d, v24' % (16 * 2752))
    a('v_add_u32 v27, %d, v24' % (18 * 2752))
    for ty in range(2):
        for kap in range(8):
            a('global_load_dword v%d, v%d, s[%d:%d] offset:%d' % (64 + 8 * ty + kap, 24 + kap // 2, 20 + 2 * ty, 21 + 2 * ty, 1376 if kap & 1 else -1376))
    a('s_mov_b32 s52, %d' % (MOD + 3 * 2048))
    a('buffer_load_dwordx4 v[80:83], v7, %s, s52 offen offset:2048' % WS)
    a('buffer_load_dwordx4 v[84:87], v7, %s, s52 offen offset:2112' % WS)
    a('buffer_load_dwordx4 v[88:91], v7, %s, s52 offen' % WS)
    a('buffer_load_dwordx4 v[92:95], v7, %s, s52 offen offset:64' % WS)

    def kcopy():
        a('v_lshrrev_b32 v28, 1, v4')
        a('v_mul_u32_u24 v28, %d, v28' % K2_CS)
        a('v_and_b32 v29, 1, v4')
        a('v_lshl_add_u32 v28, v29, 4, v28')
        for r in range(32, 36):
            a('v_mov_b32 v%d, 0' % r)
        a('ds_write_b128 v28, v[32:35]')
        a('v_cmp_ne_u32 vcc, 0, v2')
        k.stamp(1)
        for ch in range(2):
            P, D = 8 + 8 * ch, 12 + 8 * ch
            o = 32 + K2_KCH * ch
            T = 36 + 12 * ch
            a('ds_write_b128 v3, %s offset:%d' % (vr(D, 4), o))
            a('v_cndmask_b32 v%d, 0, v%d, vcc' % (P, P))
            a('v_cndmask_b32 v%d, 0, v%d, vcc' % (T + 4, P + 1))
            seq = [P, T + 4, D, D + 1, D + 2, D + 3]
            for q in range(4):
                a('v_alignbyte_b32 v%d, v%d, v%d, 2' % (T + q, seq[q + 2], seq[q + 1]))
            a('ds_write_b128 v3, %s offset:%d' % (vr(T, 4), o + K2_CS))
            for q in range(3):
                a('v_mov_b32 v%d, v%d' % (T + 5 + q, D + q))
            a('ds_write_b128 v3, %s offset:%d' % (vr(T + 4, 4), o + 2 * K2_CS))
            for q in range(4):
                a('v_alignbyte_b32 v%d, v%d, v%d, 2' % (T + 8 + q, seq[q + 1], seq[q]))
            a('ds_write_b128 v3, %s offset:%d' % (vr(T + 8, 4), o + 3 * K2_CS))
        a('s_waitcnt lgkmcnt(0)')
        k.stamp(2)
        a('s_barrier')
    kcopy()
    a('s_mov_b32 s53, 0x3f803f80')
    for r in range(8, 16):
        a('v_mov_b32 v%d, 0' % r)
    a('v_lshrrev_b32 v6, 2, v4')
    a('v_lshlrev_b32 v6, 14, v6')
    a('v_and_b32 v7, 3, v4')
    a('v_lshl_add_u32 v6, v7, 6, v6')
    a('v_lshl_add_u32 v6, v5, 8, v6')
    a('s_lshl_b32 s54, s47, 16')
    a('s_lshl_b32 s55, s49, 10')
    a('s_add_u32 s54, s54, s55')
    a('s_add_u32 s54, s54, %d' % WP)
    k.stamp(3)
    for ty in range(2):
        for kap in range(8):
            src = 64 + 8 * ty + kap
            p = 16 + 2 * kap
            a('v_lshlrev_b32 v%d, 16, v%d' % (p, src))
            a('v_and_b32 v%d, 0xffff0000, v%d' % (p + 1, src))
        for kap in range(8):
            p = vr(16 + 2 * kap, 2)
            sel = kap & 1
            a('v_pk_fma_f32 %s, %s, %s, %s op_sel:[%d,0,0] op_sel_hi:[%d,1,1]' % (vr(12 + 2 * ty, 2), vr(88 + (kap & ~1), 2), p, vr(12 + 2 * ty, 2), sel, sel))
            a('v_pk_mul_f32 %s, %s, %s op_sel:[%d,0] op_sel_hi:[%d,1]' % (p, vr(80 + (kap & ~1), 2), p, sel, sel))
        for e in range(2):
            r = 2 * ty + e
            o = 32 + 4 * r
            for q in range(4):
                a('v_cvt_pk_bf16_f32 v%d, v%d, v%d' % (o + q, 16 + 4 * q + e, 18 + 4 * q + e))
            a('buffer_store_dwordx4 %s, v6, %s, s54 offen offset:%d%s' % (vr(o, 4), WS, 16 * r, OPT.get('wp_sc', '')))
            for q in range(4):
                a('v_dot2c_f32_bf16 v%d, s53, v%d' % (8 + r, o + q))
    for b in (8, 12):
        a('v_permlane32_swap_b32 v%d, v%d' % (b, b + 2))
        a('v_permlane32_swap_b32 v%d, v%d' % (b + 1, b + 3))
    for b in (8, 12):
        a('v_add_f32 v%d, v%d, v%d' % (b, b, b + 2))
        a('v_add_f32 v%d, v%d, v%d' % (b + 1, b + 1, b + 3))
    for b in (8, 12):
        a('v_permlane16_swap_b32 v%d, v%d' % (b, b + 1))
    a('v_add_f32 v8, v8, v9')
    a('v_add_f32 v9, v12, v13')
    a('v_lshlrev_b32 v7, 5, v4')
    a('v_lshl_add_u32 v7, v5, 3, v7')
    a('s_lshl_b32 s55, s46, 9')
    a('v_add_u32 v10, s55, v7')
    a('ds_write_b64 v10, v[8:9] offset:%d' % K2_SP)
    a('s_waitcnt lgkmcnt(0)')
    k.stamp(4)
    a('s_barrier')
    a('s_cmp_lg_u32 s46, 0')
    a('s_cbranch_scc1 k2_sideend')
    a('v_lshlrev_b32 v7, 3, v0')
    for w in range(4):
        a('ds_read_b64 %s, v7 offset:%d' % (vr(8 + 2 * w, 2), K2_SP + 512 * w))
    a('s_mul_i32 s55, s48, %d' % CSB_STRIDE)
    a('s_lshl_b32 s56, s47, 9')
    a('s_add_u32 s55, s55, s56')
    a('s_add_u32 s55, s55, %d' % CSB)
    a('v_pk_add_f32 v[8:9], v[8:9], v[10:11]')
    a('v_pk_add_f32 v[12:13], v[12:13], v[14:15]')
    a('v_pk_add_f32 v[8:9], v[8:9], v[12:13]')
    a('buffer_store_dwordx2 v[8:9], v7, %s, s55 offen' % WS)
    a.label('k2_sideend')
    k.end('s3', WS)
    a.label('k2_wdload')
    a('s_sub_u32 s47, s42, 172')
    a('s_lshl_b32 s47, s47, 2')
    a('s_add_u32 s47, s47, s46')
    a('v_lshlrev_b32 v6, 13, v5')
    a('v_lshl_add_u32 v6, v4, 3, v6')
    a('v_add_u32 v6, 4096, v6')

    def wd_loads():
        a('s_and_b32 s48, s47, 7')
        a('s_lshr_b32 s49, s47, 3')
        a('s_lshl_b32 s50, s49, 15')
        a('s_lshl_b32 s51, s48, 7')
        a('s_add_u32 s50, s50, s51')
        a('v_add_u32 v7, s50, v6')
        for kap in range(8):
            a('global_load_dwordx2 %s, v7, s[24:25] offset:%d' % (vr(64 + 2 * kap, 2), 1024 * kap - 4096))
    wd_loads()
    kcopy()
    a('s_mov_b32 s53, 0x05040100')
    a('s_mov_b32 s54, 0x07060302')
    a('v_lshlrev_b32 v8, 4, v0')

    def wd_compute():
        a('s_mul_i32 s55, s48, %d' % WD_STRIDE)
        a('s_lshl_b32 s56, s49, 12')
        a('s_add_u32 s55, s55, s56')
        a('s_add_u32 s55, s55, %d' % WD)
        for c in range(4):
            for q in range(4):
                a('v_perm_b32 v%d, v%d, v%d, %s' % (16 + 4 * c + q, 64 + 2 * (2 * q + 1) + c // 2, 64 + 2 * (2 * q) + c // 2, 's54' if c & 1 else 's53'))
            a('buffer_store_dwordx4 %s, v8, %s, s55 offen offset:%d%s' % (vr(16 + 4 * c, 4), WS, 1024 * c, OPT.get('wp_sc', '')))
    wd_compute()
    a('s_add_u32 s47, s47, 336')
    a('s_cmp_ge_u32 s47, 344')
    a('s_cbranch_scc1 k2_wdend')
    wd_loads()
    wd_compute()
    a.label('k2_wdend')
    k.end('s3', WS)
    a.label('k2_exit')
    a('s_endpgm')
    return dict(name='k2_kernel', grid=256, block=512, lds=K2_LDS, vgpr=176, accum=176)


K3_ST = 131072
K3_CB = K3_ST + 1024
K3_LDS = K3_CB + 4 * 512


def gen_k3(a):
    k = K(a, 2)
    WS = 's[36:39]'
    a.label('k3_kernel')
    a('s_load_dwordx2 s[36:37], s[0:1], 120')
    a('s_and_b32 s40, s2, 7')
    a('s_lshr_b32 s41, s2, 3')
    a('s_and_b32 s42, s40, 1')
    a('s_lshl_b32 s42, s42, 3')
    a('s_and_b32 s43, s41, 7')
    a('s_add_u32 s42, s42, s43')
    a('s_lshr_b32 s43, s40, 1')
    a('s_lshl_b32 s43, s43, 2')
    a('s_lshr_b32 s44, s41, 3')
    a('s_add_u32 s43, s43, s44')
    a('s_cmp_ge_u32 s2, 256')
    a('s_cbranch_scc1 k3_exit')
    a('s_cmp_ge_u32 s43, 15')
    a('s_cbranch_scc1 k3_exit')
    k.begin()
    a('v_lshrrev_b32 v1, 6, v0')
    a('v_and_b32 v0, 63, v0')
    a('v_readfirstlane_b32 s3, v1')
    a('s_mov_b32 s38, %d' % WS_SRD)
    a('s_mov_b32 s39, 0x20000')
    a('v_lshlrev_b32 v1, 4, v0')
    a('s_mul_i32 s45, s43, 12')
    a('s_mul_i32 s46, s3, 3')
    a('s_add_u32 s45, s45, s46')
    a('s_lshl_b32 s46, s45, 14')
    a('s_add_u32 s46, s46, %d' % WP)
    a('s_add_u32 s47, s46, 16384')
    a('s_add_u32 s48, s46, 32768')
    a('s_lshl_b32 s49, s42, 17')
    a('s_lshl_b32 s50, s3, 11')
    a('s_add_u32 s49, s49, s50')
    a('s_add_u32 s49, s49, %d' % X1T)
    a('s_mov_b32 m0, s50')
    a('s_waitcnt lgkmcnt(0)')

    def issue(s):
        a('buffer_load_dwordx4 v1, %s, s49 offen lds' % WS, tag='x%d' % s)
        a('buffer_load_dwordx4 v1, %s, s49 offen offset:1024 lds' % WS, tag='x%d' % s)
        for c in range(3):
            a('buffer_load_dwordx4 %s, v1, %s, s%d offen offset:%d' % (ar(12 * s + 4 * c, 4), WS, 46 + c, 1024 * (s & 3)))
        if s < 15:
            a('s_add_u32 s49, s49, 8192')
            a('s_add_u32 m0, m0, 8192')
            if s & 3 == 3:
                for c in range(3):
                    a('s_add_u32 s%d, s%d, 4096' % (46 + c, 46 + c))
    NPRE = 11
    issue(0)
    a('v_lshlrev_b32 v2, 3, v0')
    a('s_lshl_b32 s51, s45, 7')
    a('s_add_u32 s51, s51, %d' % CSB)
    for q in range(4):
        a('buffer_load_dwordx2 %s, v2, %s, s51 offen' % (vr(200 + 2 * q, 2), WS))
        if q < 3:
            a('s_add_u32 s51, s51, %d' % CSB_STRIDE)
    for s in range(1, NPRE):
        issue(s)
    a('v_lshrrev_b32 v3, 2, v0')
    a('v_and_b32 v4, 3, v0')
    a('v_lshlrev_b32 v4, 3, v4')
    a('v_lshl_add_u32 v4, v3, 8, v4')
    a('v_and_b32 v3, 7, v3')
    a('s_lshl_b32 s52, s3, 1')
    a('v_xor_b32 v3, s52, v3')
    for u in range(8):
        a('v_xor_b32 v5, %d, v3' % u)
        a('v_lshl_add_u32 v%d, v5, 5, v4' % (8 + u))
    for r in range(4, 8):
        a('v_mov_b32 v%d, 0' % r)
    a('s_mov_b32 s53, 0x3f803f80')
    a('v_pk_add_f32 v[200:201], v[200:201], v[202:203]')
    a('v_pk_add_f32 v[204:205], v[204:205], v[206:207]')
    a('v_and_b32 v3, 2, v0')
    a('v_cmp_eq_u32 vcc, 0, v3')
    a('v_mov_b32 v202, %s' % f2u(-LOG2E))
    a('v_cndmask_b32 v202, 1.0, v202, vcc')
    a('v_pk_add_f32 v[200:201], v[200:201], v[204:205]')
    a('s_lshl_b32 s54, s3, 9')
    a('s_add_u32 s54, s54, %d' % K3_CB)
    a('v_pk_mul_f32 v[200:201], v[200:201], v[202:203] op_sel_hi:[1,0]')
    a('v_lshl_add_u32 v2, v0, 2, s54')
    a('ds_write2st64_b32 v2, v200, v201 offset0:0 offset1:1')
    a('v_and_b32 v2, 48, v0')
    a('v_add_u32 v2, s54, v2')
    a('s_waitcnt lgkmcnt(0)')
    CS, BI = 200, 212
    for c in range(3):
        a('ds_read_b128 %s, v2 offset:%d' % (vr(CS + 4 * c, 4), 64 * c))
        a('ds_read_b128 %s, v2 offset:%d' % (vr(BI + 4 * c, 4), 256 + 64 * c))
    k.stamp(1)
    ACC = 16
    XB = 112

    def reads(s):
        base = XB + 32 * (s & 1)
        out = []
        for u in range(8):
            for hf in range(2):
                out.append('ds_read_b64_tr_b16 %s, v%d offset:%d' % (vr(base + 4 * u + 2 * hf, 2), 8 + u, (s & 7) * 8192 + hf * 4096))
        return out
    a.wait_tag('x0')
    a('s_barrier')
    k.stamp(2)
    for r in reads(0):
        a(r)
    for s in range(16):
        queue = []
        if s < 15:
            a.wait_tag('x%d' % (s + 1))
            a('s_barrier')
            if s + NPRE < 16:
                issue(s + NPRE)
            if s == 7:
                for u in range(8):
                    a('v_add_u32 v%d, 0x10000, v%d' % (8 + u, 8 + u))
            queue = reads(s + 1)
        base = XB + 32 * (s & 1)
        dots = []
        for u in range(2):
            for q in range(4):
                dots.append('v_dot2c_f32_bf16 v%d, s53, v%d' % (4 + u, base + 4 * u + q))
                dots.append('v_dot2c_f32_bf16 v%d, v%d, v%d' % (6 + u, base + 4 * u + q, base + 4 * u + q))
        fin = []
        if s == 15:
            fin = [
                'v_permlane32_swap_b32 v4, v5', 'v_permlane32_swap_b32 v6, v7',
                'v_add_f32 v4, v4, v5', 'v_add_f32 v6, v6, v7',
                'v_mov_b32 v5, v4', 'v_mov_b32 v7, v6',
                'v_lshrrev_b32 v2, 5, v0', 'v_xor_b32 v2, s52, v2',
                'v_permlane16_swap_b32 v4, v5', 'v_permlane16_swap_b32 v6, v7',
                'v_add_f32 v4, v4, v5', 'v_add_f32 v6, v6, v7',
                'v_mul_f32 v4, %s, v4' % f2u(1 / 512), 'v_mul_f32 v6, %s, v6' % f2u(1 / 512),
                'v_fma_f32 v6, -v4, v4, v6', 'v_max_f32 v6, 0, v6',
                'v_add_f32 v6, %s, v6' % f2u(1e-5), 'v_rsq_f32 v6, v6',
                'v_and_b32 v3, 15, v0', 'v_lshlrev_b32 v3, 3, v3',
                'v_mul_f32 v7, -v4, v6',
                'v_lshl_add_u32 v2, v2, 7, v3', 'v_add_u32 v2, %d, v2' % K3_ST,
                'ds_write_b64 v2, v[6:7]',
            ]
        extra = dots + fin
        n = 0
        for u in range(8):
            for c in range(3):
                acc = vr(ACC + 12 * u + 4 * c, 4)
                a('v_mfma_f32_16x16x32_bf16 %s, %s, %s, %s' % (acc, ar(12 * s + 4 * c, 4), vr(base + 4 * u, 4), acc if s else '0'))
                n += 1
                if queue and n % 3 != 0:
                    a(queue.pop(0))
                if n >= 4 or s == 15:
                    for _ in range(2 if s == 15 else 1):
                        if extra:
                            a(extra.pop(0))
        assert not queue and not extra
    k.stamp(3)
    a('s_lshl_b32 s54, s52, 7')
    a('v_add_u32 v3, %d, v3' % K3_ST)
    a('s_waitcnt lgkmcnt(0)')
    a('s_barrier')
    SB = 112
    for u in range(8):
        a('s_xor_b32 s55, s54, %d' % (u * 128))
        a('v_add_u32 v2, s55, v3')
        a('ds_read_b64 %s, v2' % vr(SB + 2 * u, 2))
    a('v_lshrrev_b32 v4, 4, v0')
    a('v_xor_b32 v4, s52, v4')
    a('v_xor_b32 v5, 4, v4')
    a('v_and_b32 v6, 15, v0')
    a('v_lshlrev_b32 v6, 4, v6')
    a('s_mov_b32 s55, %d' % H_STRIDE)
    a('v_mad_u32_u24 v4, v4, s55, v6')
    a('v_mad_u32_u24 v5, v5, s55, v6')
    a('s_mul_i32 s55, s42, %d' % (8 * H_STRIDE))
    a('s_lshl_b32 s56, s45, 8')
    a('s_add_u32 s55, s55, s56')
    a('s_add_u32 s55, s55, %d' % HH)
    for u in range(8):
        a('v_mul_f32 v%d, %s, v%d' % (128 + 2 * u, f2u(-LOG2E), SB + 2 * u))
    k.stamp(4)
    T = 144
    for c in range(3):
        if c or True:
            a('s_add_u32 s56, s45, %d' % c)
            a('s_cmp_ge_u32 s56, 172')
            a('s_cbranch_scc1 k3_done')
        for G in range(2):
            HO = 176 + 4 * (2 * c + G)
            us = range(4 * G, 4 * G + 4)
            for u in us:
                t = T + 4 * (u & 3)
                st = vr(SB + 2 * u, 2)
                a('v_pk_fma_f32 %s, %s, %s, %s op_sel:[1,0,0] op_sel_hi:[1,1,1]' % (vr(t, 2), st, vr(CS + 4 * c, 2), vr(BI + 4 * c, 2)))
                a('v_pk_fma_f32 %s, %s, %s, %s op_sel:[1,0,0] op_sel_hi:[1,1,1]' % (vr(t + 2, 2), st, vr(CS + 4 * c + 2, 2), vr(BI + 4 * c + 2, 2)))
            for u in us:
                t = T + 4 * (u & 3)
                acc = ACC + 12 * u + 4 * c
                a('v_pk_fma_f32 %s, %s, %s, %s op_sel_hi:[1,0,1]' % (vr(t, 2), vr(acc, 2), vr(128 + 2 * u, 2), vr(t, 2)))
            for u in us:
                t = T + 4 * (u & 3)
                acc = ACC + 12 * u + 4 * c
                a('v_exp_f32 v%d, v%d' % (t, t))
                a('v_exp_f32 v%d, v%d' % (t + 1, t + 1))
                a('v_pk_fma_f32 %s, %s, %s, %s op_sel_hi:[1,0,1]' % (vr(t + 2, 2), vr(acc + 2, 2), vr(SB + 2 * u, 2), vr(t + 2, 2)))
            for u in us:
                t = T + 4 * (u & 3)
                a('v_pk_add_f32 %s, %s, 1.0 op_sel_hi:[1,0]' % (vr(t, 2), vr(t, 2)))
            for u in us:
                t = T + 4 * (u & 3)
                a('v_rcp_f32 v%d, v%d' % (t, t))
                a('v_rcp_f32 v%d, v%d' % (t + 1, t + 1))
            for u in us:
                t = T + 4 * (u & 3)
                a('v_pk_mul_f32 %s, %s, %s' % (vr(t, 2), vr(t, 2), vr(t + 2, 2)))
            for u in us:
                t = T + 4 * (u & 3)
                a('v_cvt_pk_bf16_f32 v%d, v%d, v%d' % (HO + (u & 3), t, t + 1))
            a('v_permlane32_swap_b32 v%d, v%d' % (HO, HO + 2))
            a('v_permlane32_swap_b32 v%d, v%d' % (HO + 1, HO + 3))
            a('v_permlane16_swap_b32 v%d, v%d' % (HO, HO + 1))
            a('v_permlane16_swap_b32 v%d, v%d' % (HO + 2, HO + 3))
            a('buffer_store_dwordx4 %s, v%d, %s, s55 offen offset:%d' % (vr(HO, 4), 4 + G, WS, 256 * c))
    a.label('k3_done')
    k.end('s3', WS)
    a.label('k3_exit')
    a('s_endpgm')
    return dict(name='k3_kernel', grid=256, block=256, lds=K3_LDS, vgpr=224 + 192, accum=224)


K4_X = 131072
K4_LDS = K4_X + 8192


def gen_k4(a):
    k = K(a, 3)
    WS = 's[36:39]'
    OUT = 's[32:35]'
    a.label('k4_kernel')
    a('s_cmp_ge_u32 s2, 256')
    a('s_cbranch_scc1 k4_exit')
    k.begin()
    a('s_load_dwordx2 s[36:37], s[0:1], 120')
    a('s_load_dwordx2 s[32:33], s[0:1], 104')
    a('v_lshrrev_b32 v1, 6, v0')
    a('v_and_b32 v0, 63, v0')
    a('v_readfirstlane_b32 s3, v1')
    a('s_mov_b32 s38, %d' % WS_SRD)
    a('s_mov_b32 s39, 0x20000')
    a('s_mov_b32 s34, %d' % (2048 * 512 * 2))
    a('s_mov_b32 s35, 0x20000')
    a('s_and_b32 s40, s2, 7')
    a('s_lshr_b32 s41, s2, 3')
    a('s_and_b32 s42, s40, 1')
    a('s_lshl_b32 s42, s42, 4')
    a('s_and_b32 s43, s40, 2')
    a('s_lshl_b32 s43, s43, 2')
    a('s_add_u32 s42, s42, s43')
    a('s_and_b32 s43, s41, 7')
    a('s_add_u32 s42, s42, s43')
    a('s_and_b32 s43, s40, 4')
    a('s_lshr_b32 s44, s41, 3')
    a('s_add_u32 s43, s43, s44')
    a('v_lshlrev_b32 v1, 4, v0')
    a('s_lshl_b32 s45, s42, 2')
    a('s_add_u32 s45, s45, s3')
    a('s_mul_i32 s46, s45, %d' % H_STRIDE)
    a('s_add_u32 s46, s46, %d' % HH)
    a('s_mul_i32 s47, s43, %d' % WD_STRIDE)
    a('s_lshl_b32 s48, s3, 10')
    a('s_add_u32 s47, s47, s48')
    a('s_add_u32 s47, s47, %d' % WD)
    a('s_mov_b32 m0, s48')
    a('s_waitcnt lgkmcnt(0)')
    NS = 43

    def issue(s):
        if s == 32:
            a('s_mov_b32 m0, s48')
        a('buffer_load_dwordx4 v1, %s, s47 offen lds' % WS, tag='w%d' % s)
        a('buffer_load_dwordx4 %s, v1, %s, s46 offen offset:%d' % (ar(4 * s, 4), WS, 1024 * (s & 3)))
        if s < NS - 1:
            a('s_add_u32 s47, s47, 4096')
            a('s_add_u32 m0, m0, 4096')
            if s & 3 == 3:
                a('s_add_u32 s46, s46, 4096')
    for s in range(4):
        issue(s)
    a('s_mov_b32 s49, m0')
    a('v_lshrrev_b32 v2, 3, v0')
    a('v_and_b32 v3, 7, v0')
    a('v_lshlrev_b32 v3, 4, v3')
    a('v_lshl_add_u32 v3, v2, 8, v3')
    a('v_lshrrev_b32 v2, 2, v2')
    a('s_and_b32 s50, s42, 1')
    a('v_xor_b32 v2, s50, v2')
    a('v_lshl_add_u32 v3, v2, 7, v3')
    a('s_lshr_b32 s50, s42, 1')
    a('s_lshl_b32 s50, s50, 17')
    a('s_lshl_b32 s51, s43, 14')
    a('s_add_u32 s50, s50, s51')
    a('s_lshl_b32 s51, s3, 12')
    a('s_add_u32 s50, s50, s51')
    a('s_add_u32 s50, s50, %d' % X1T)
    a('s_lshl_b32 s51, s3, 11')
    a('s_add_u32 m0, s51, %d' % K4_X)
    a('s_add_u32 s52, s50, 1024')
    a('buffer_load_dwordx4 v3, %s, s50 offen lds' % WS, tag='x')
    a('buffer_load_dwordx4 v3, %s, s52 offen offset:1024 lds' % WS, tag='x')
    a('s_mov_b32 m0, s49')
    a('v_and_b32 v4, 15, v0')
    a('v_lshlrev_b32 v5, 4, v4')
    a('s_lshl_b32 s51, s43, 8')
    a('s_add_u32 s51, s51, %d' % (MOD + 5 * 2048))
    a('buffer_load_dwordx4 v[8:11], v5, %s, s51 offen' % WS)
    for s in range(4, 28):
        issue(s)
    a('v_lshrrev_b32 v6, 4, v0')
    a('v_lshlrev_b32 v7, 9, v4')
    a('v_lshl_add_u32 v7, v6, 3, v7')
    a('v_add_u32 v7, %d, v7' % K4_X)
    a('v_add_u32 v2, 0x10000, v1')
    a('v_lshlrev_b32 v5, 3, v4')
    a('v_lshl_add_u32 v5, v6, 12, v5')
    a('s_lshl_b32 s51, s45, 14')
    a('s_lshl_b32 s52, s43, 7')
    a('s_add_u32 s51, s51, s52')
    k.stamp(1)
    ACC = 16
    XR = 32
    WB = 64
    groups = [list(range(g, min(g + 4, NS))) for g in range(0, NS, 4)]
    for j, grp in enumerate(groups):
        a.wait_tag(*(['w%d' % s for s in grp] + (['x'] if j == 1 else [])))
        a('s_barrier')
        if j == 0:
            k.stamp(2)
        rd = []
        for i, s in enumerate(grp):
            slot = s & 31
            for c in range(4):
                rd.append('ds_read_b128 %s, v%d offset:%d' % (vr(WB + 16 * i + 4 * c, 4), 1 if slot < 16 else 2, (slot & 15) * 4096 + 1024 * c))
        for r in rd[:8]:
            a(r)
        rd = rd[8:]
        if j + 7 < len(groups):
            for s in groups[j + 7]:
                issue(s)
        if j == 1:
            for c in range(4):
                a('s_xor_b32 s52, s3, %d' % c)
                a('s_lshl_b32 s52, s52, 5')
                a('v_add_u32 v3, s52, v7')
                a('ds_read_b64 %s, v3 offset:%d' % (vr(XR + 2 * c, 2), 128 * c))
        for i, s in enumerate(grp):
            for c in range(4):
                acc = vr(ACC + 4 * c, 4)
                a('v_mfma_f32_16x16x32_bf16 %s, %s, %s, %s' % (acc, ar(4 * s, 4), vr(WB + 16 * i + 4 * c, 4), acc if s else '0'))
                if rd:
                    a(rd.pop(0))
        if j == 2:
            for c in range(4):
                for e in range(2):
                    a('v_lshlrev_b32 v%d, 16, v%d' % (40 + 4 * c + 2 * e, XR + 2 * c + e))
                    a('v_and_b32 v%d, 0xffff0000, v%d' % (41 + 4 * c + 2 * e, XR + 2 * c + e))
    k.stamp(3)
    for c in range(4):
        for e in (0, 2):
            sel = c & 1
            a('v_pk_fma_f32 %s, %s, %s, %s op_sel:[%d,0,0] op_sel_hi:[%d,1,1]' % (vr(40 + 4 * c + e, 2), vr(8 + (c & 2), 2), vr(ACC + 4 * c + e, 2), vr(40 + 4 * c + e, 2), sel, sel))
    for r in range(4):
        a('v_cvt_pk_bf16_f32 v%d, v%d, v%d' % (XR + 2 * r, 40 + r, 44 + r))
        a('v_cvt_pk_bf16_f32 v%d, v%d, v%d' % (XR + 2 * r + 1, 48 + r, 52 + r))
        a('buffer_store_dwordx2 %s, v5, %s, s51 offen offset:%d' % (vr(XR + 2 * r, 2), OUT, 1024 * r))
    k.end('s3', WS)
    a.label('k4_exit')
    a('s_endpgm')
    return dict(name='k4_kernel', grid=256, block=256, lds=K4_LDS, vgpr=128 + 172, accum=128)


def gen_report(a, nk):
    a.label('rep_kernel')
    a('s_cmp_ge_u32 s2, 1')
    a('s_cbranch_scc1 rep_exit')
    a('s_load_dwordx4 s[4:7], s[0:1], 112')
    a('v_lshlrev_b32 v1, 2, v0')
    a('v_and_b32 v2, 1, v0')
    a('v_sub_u32 v2, v2, 1')
    a('ds_write_b32 v1, v2')
    a('v_and_b32 v3, 0xfb, v0')
    a('v_lshlrev_b32 v3, 10, v3')
    a('v_add_u32 v3, %d, v3' % STAMPS)
    a('v_mov_b32 v4, 0')
    a('s_waitcnt lgkmcnt(0)')
    a('s_barrier')
    for kk in range(nk):
        a('global_load_dword v5, v3, s[6:7]')
        a('global_load_dword v6, v3, s[6:7] offset:28')
        a('ds_min_u32 v4, v5 offset:%d' % (16 * kk))
        a('ds_max_u32 v4, v5 offset:%d' % (16 * kk + 4))
        a('ds_min_u32 v4, v6 offset:%d' % (16 * kk + 8))
        a('ds_max_u32 v4, v6 offset:%d' % (16 * kk + 12))
        a('v_add_u32 v3, %d, v3' % (256 * 16 * 64))
    a('s_waitcnt lgkmcnt(0)')
    a('s_barrier')
    a('ds_read_b32 v5, v1')
    a('ds_read_b32 v6, v4')
    a('v_cmp_gt_u32 vcc, 16, v0')
    a('v_sub_u32 v5, v5, v6')
    a('s_and_b64 exec, exec, vcc')
    a('s_cbranch_execz rep_exit')
    a('global_store_dword v1, v5, s[4:5]')
    a.label('rep_exit')
    a('s_endpgm')
    return dict(name='rep_kernel', grid=1, block=256, lds=1024, vgpr=16, accum=16)


def build(diag=False, opt=None):
    global DIAG, OPT
    DIAG = diag
    OPT = opt or {}
    ref = open('cdna_kernels/%s.s.ref' % NAME).read().split('\n')
    head = [l for l in ref if l.startswith(';') and '@launch' not in l and 'Override launch' not in l and 'grid=ceil' not in l
            and not l.startswith('    ')]
    a = Asm()
    infos = []
    for g in (gen_k1, gen_k2, gen_k3, gen_k4):
        a.raw('.p2align 8')
        infos.append(g(a))
    a.raw('code_end:')
    if OPT.get('report'):
        a.raw('.p2align 8')
        infos.append(gen_report(a, len(infos)))
    out = head
    for i in infos:
        out.append('; @launch kernel=%s grid=(%d,1,1) block=(%d,1,1) lds=%d' % (i['name'], i['grid'], i['block'], i['lds']))
    out.append('.amdgcn_target "amdgcn-amd-amdhsa--gfx950"')
    out.append('.text')
    for i in infos:
        out.append('.globl %s' % i['name'])
        out.append('.type %s,@function' % i['name'])
    out.append(a.text())
    out.append('.section .rodata,"a"')
    for i in infos:
        out.append('.p2align 6')
        out.append('.amdhsa_kernel %s' % i['name'])
        out.append('  .amdhsa_next_free_vgpr %d' % i['vgpr'])
        out.append('  .amdhsa_next_free_sgpr 102')
        out.append('  .amdhsa_accum_offset %d' % i['accum'])
        out.append('  .amdhsa_group_segment_fixed_size 0')
        out.append('  .amdhsa_kernarg_size 128')
        out.append('  .amdhsa_user_sgpr_count 2')
        out.append('  .amdhsa_user_sgpr_kernarg_segment_ptr 1')
        out.append('  .amdhsa_system_sgpr_workgroup_id_x 1')
        out.append('.end_amdhsa_kernel')
    return '\n'.join(out) + '\n'


if __name__ == '__main__':
    import argparse
    ap = argparse.ArgumentParser()
    ap.add_argument('-o', default='cdna_kernels/%s.s' % NAME)
    ap.add_argument('--diag', action='store_true')
    ap.add_argument('--opt', action='append', default=[])
    args = ap.parse_args()
    opt = dict(o.split('=', 1) for o in args.opt)
    open(args.o, 'w').write(build(args.diag, opt))
```

```python
import sys, math
from asmlib import Asm, vr, ar, sr, f2u

NAME = 'adaLN_cond__ssm_conv_s4d__glu_gated_glu__prompt'
LOG2E = 1.4426950408889634

XT = 0x000000
KX = 0x200000
X1T = 0x400000
STATS = 0x600000
MOD = 0x604000
CSB = 0x608000
CSB_STRIDE = 0x6000
WD = 0x620000
WD_STRIDE = 43 * 4096
WP = 0x780000
HH = 0xA80000
H_STRIDE = 172 * 256
WS_USED = 0x1000000
STAMPS = 0x1000000
WS_SRD = 0x1100000

DIAG = False
OPT = {}


class K:
    def __init__(self, a, idx):
        self.a, self.idx, self.nst = a, idx, 0

    def stamp(self, slot):
        if DIAG and (slot in (0, 7) or not OPT.get('light')):
            self.a('s_memrealtime s[%d:%d]' % (80 + 2 * slot, 81 + 2 * slot))
            self.a('s_waitcnt lgkmcnt(0)')

    def end(self, swave, srd, vt=0):
        a = self.a
        if DIAG:
            a('s_waitcnt vmcnt(0)')
            a('s_memtime s[98:99]')
            self.stamp(7)
            a('s_sub_u32 s98, s98, s100')
            a('s_mov_b64 exec, 1')
            a('s_lshl_b32 s96, s2, 4')
            a('s_add_u32 s96, s96, %s' % swave)
            a('s_lshl_b32 s96, s96, 6')
            a('s_add_u32 s96, s96, %d' % (STAMPS + self.idx * 256 * 16 * 64))
            a('v_mov_b32 v%d, 0' % vt)
            for i in range(8):
                a('v_mov_b32 v%d, s%d' % (vt + 1, 80 + 2 * i))
                a('buffer_store_dword v%d, v%d, %s, s96 offen offset:%d' % (vt + 1, vt, srd, 4 * i))
            a('v_mov_b32 v%d, s98' % (vt + 1))
            a('buffer_store_dword v%d, v%d, %s, s96 offen offset:32' % (vt + 1, vt, srd))
        a('s_endpgm')

    def begin(self):
        if DIAG:
            for i in range(1, 8):
                self.a('s_mov_b32 s%d, 0' % (80 + 2 * i))
            self.a('s_memtime s[100:101]')
            self.stamp(0)


def cmul(a, d, x, y, t):
    a('v_pk_mul_f32 %s, %s, %s op_sel:[0,0] op_sel_hi:[0,1]' % (vr(t, 2), vr(x, 2), vr(y, 2)))
    a('v_pk_fma_f32 %s, %s, %s, %s op_sel:[1,1,0] op_sel_hi:[1,0,1] neg_lo:[1,0,0]' % (vr(d, 2), vr(x, 2), vr(y, 2), vr(t, 2)))


K1_RS = 544
K1_CH = 64 * K1_RS
K1_GP = 2 * K1_CH
K1_CNT = K1_GP + 256
K1_LDS = K1_CNT + 64


def gen_k1(a):
    k = K(a, 0)
    WS = 's[36:39]'
    a.label('k1_kernel')
    a('s_cmp_ge_u32 s2, 256')
    a('s_cbranch_scc1 k1_exit')
    k.begin()
    a('s_load_dwordx16 s[4:19], s[0:1], 0')
    a('s_load_dwordx4 s[24:27], s[0:1], 88')
    a('s_load_dwordx2 s[36:37], s[0:1], 120')
    a('v_lshrrev_b32 v1, 6, v0')
    a('v_and_b32 v0, 63, v0')
    a('v_readfirstlane_b32 s3, v1')
    a('s_mov_b32 s38, %d' % WS_SRD)
    a('s_mov_b32 s39, 0x20000')
    a('s_and_b32 s40, s2, 7')
    a('s_lshr_b32 s41, s2, 3')
    a('s_lshl_b32 s42, s40, 5')
    a('s_add_u32 s42, s42, s41')
    a('s_cmp_ge_u32 s3, 8')
    a('s_cbranch_scc1 k1_notkg')
    a('s_and_b32 s43, s3, 3')
    a('s_lshl_b32 s44, s42, 9')
    a('s_lshl_b32 s45, s43, 7')
    a('s_add_u32 s44, s44, s45')
    a('v_lshl_add_u32 v1, v0, 1, s44')
    a('s_lshr_b32 s45, s43, 1')
    a('s_lshl_b32 s46, s42, 1')
    a('s_add_u32 s46, s46, s45')
    a('s_lshl_b32 s47, s46, 1')
    a('v_mov_b32 v2, s47')
    for r in range(4, 10):
        a('v_mov_b32 v%d, 0' % r)
    a('global_load_short_d16_hi v4, v2, s[14:15]')
    a('global_load_short_d16_hi v5, v1, s[6:7]')
    a('global_load_short_d16_hi v6, v1, s[8:9]')
    a('global_load_short_d16_hi v8, v1, s[10:11]')
    a('global_load_short_d16_hi v9, v1, s[12:13]')
    a('global_load_short_d16_hi v7, v2, s[16:17]')
    a('s_barrier')
    a('s_branch k1_kg')
    a.label('k1_notkg')
    a('s_cmp_ge_u32 s3, 12')
    a('s_cbranch_scc1 k1_notg')
    a('s_cmp_ge_u32 s41, 24')
    a('s_cbranch_scc1 k1_exit')
    a('s_mul_i32 s44, s40, 24')
    a('s_add_u32 s44, s44, s41')
    a('s_and_b32 s43, s3, 3')
    a('v_lshrrev_b32 v1, 1, v0')
    a('v_lshlrev_b32 v1, 2, v1')
    a('s_lshl_b32 s45, s43, 7')
    a('v_add_u32 v1, s45, v1')
    a('v_lshlrev_b32 v2, 1, v1')
    a('v_mul_u32_u24 v1, 6144, v1')
    a('v_and_b32 v3, 1, v0')
    a('v_lshl_add_u32 v1, v3, 4, v1')
    a('s_lshl_b32 s45, s44, 5')
    a('s_add_u32 s45, s45, 3072')
    a('v_add_u32 v1, s45, v1')
    a('v_add_u32 v3, 12288, v1')
    a('global_load_dwordx2 v[4:5], v2, s[24:25]')
    a('global_load_dwordx4 v[8:11], v1, s[26:27] offset:-3072')
    a('global_load_dwordx4 v[12:15], v1, s[26:27] offset:3072')
    a('global_load_dwordx4 v[16:19], v3, s[26:27] offset:-3072')
    a('global_load_dwordx4 v[20:23], v3, s[26:27] offset:3072')
    a('s_barrier')
    a('s_branch k1_g')
    a.label('k1_notg')
    a('s_cmp_eq_u32 s3, 13')
    a('s_cbranch_scc1 k1_sload')
    a('s_cmp_eq_u32 s3, 14')
    a('s_cbranch_scc1 k1_pf')
    a('s_lshr_b32 s44, s42, 2')
    a('s_and_b32 s45, s42, 3')
    a('v_and_b32 v2, 3, v0')
    a('v_lshrrev_b32 v3, 2, v0')
    a('v_lshlrev_b32 v1, 13, v2')
    a('v_lshl_add_u32 v1, v3, 4, v1')
    a('s_lshl_b32 s46, s44, 15')
    a('s_lshl_b32 s47, s45, 8')
    a('s_add_u32 s46, s46, s47')
    a('s_add_u32 s46, s46, 4096')
    a('v_add_u32 v1, s46, v1')
    for r in range(8):
        a('global_load_dwordx4 %s, v1, s[4:5] offset:%d' % (vr(8 + 4 * r, 4), 1024 * r - 4096))
    a('s_barrier')
    a('s_branch k1_t')
    a.label('k1_sload')
    a('v_lshrrev_b32 v2, 3, v0')
    a('v_and_b32 v3, 7, v0')
    a('v_lshlrev_b32 v1, 10, v2')
    a('v_lshl_add_u32 v1, v3, 4, v1')
    a('s_lshl_b32 s44, s42, 13')
    a('v_add_u32 v1, s44, v1')
    for r in range(8):
        a('global_load_dwordx4 %s, v1, s[4:5] offset:%d' % (vr(8 + 4 * r, 4), 128 * r))
    a('s_barrier')
    a('s_branch k1_s')
    a.label('k1_pf')
    a('s_getpc_b64 s[48:49]')
    a.label('k1_pcref')
    a('v_mov_b32 v1, %d' % K1_CNT)
    a('v_mov_b32 v4, 0')
    a('v_mov_b32 v5, 0')
    a('v_mov_b32 v6, 0')
    a('v_mov_b32 v7, 0')
    a('ds_write_b128 v1, v[4:7]')
    a('s_mov_b32 s50, code_end-k1_pcref')
    a('s_mov_b32 s51, 0x20000')
    a('v_lshlrev_b32 v2, 4, v0')
    a('s_lshl_b32 s44, s41, 10')
    a('s_add_u32 s44, s44, k2_kernel-k1_pcref')
    a('s_movk_i32 s45, 2048')
    for i in range(5):
        a('buffer_load_dwordx4 v[8:11], v2, s[48:51], %s offen offset:%d' % (('0', i * 1024) if i < 3 else ('s45', i * 1024 - 2048)), tag='pf')
        a.st['vm'].clear()
    a('buffer_load_dwordx4 v[8:11], v2, s[48:51], s44 offen', tag='pf')
    a('s_waitcnt lgkmcnt(0)')
    a('s_barrier')
    k.end('s3', WS)

    a.label('k1_kg')
    a('s_mov_b32 s48, %s' % f2u(LOG2E))
    a('s_and_b32 s47, s3, 1')
    a('s_mul_i32 s49, s45, %d' % K1_CH)
    a('s_lshl_b32 s50, s47, 8')
    a('s_add_u32 s50, s50, s49')
    a('v_lshl_add_u32 v3, v0, 2, s50')
    a('s_lshr_b32 s51, s3, 2')
    a('s_lshl_b32 s51, s51, 1')
    a('s_add_u32 s51, s51, s47')
    a('s_lshl_b32 s52, s51, 3')
    a('s_lshr_b32 s53, 0x33292010, s52')
    a('s_and_b32 s53, s53, 0xff')
    a('s_lshr_b32 s54, 0x03020204, s52')
    a('s_and_b32 s54, s54, 0xff')
    a('s_cmp_eq_u32 s51, 2')
    a('s_cselect_b32 s55, 1, 0')
    a('v_bfe_u32 v10, v0, 2, 2')
    a('v_and_b32 v11, 3, v0')
    a('v_mad_u32_u24 v11, v10, s54, v11')
    a('v_lshrrev_b32 v10, 1, v10')
    a('v_mad_u32_u24 v11, v10, s55, v11')
    a('v_add_u32 v11, s53, v11')
    a('v_lshrrev_b32 v12, 4, v0')
    a('v_lshlrev_b32 v13, 4, v12')
    a('v_add_u32 v13, s49, v13')
    a('s_movk_i32 s56, %d' % K1_RS)
    a('v_mad_u32_u24 v40, v11, s56, v13')
    a('v_and_b32 v10, 15, v0')
    a('v_mad_u32_u24 v41, v10, s56, v13')
    a('v_lshlrev_b32 v42, 5, v10')
    k.stamp(1)
    a('v_mul_f32 v4, s48, v4')
    a('v_mul_f32 v5, s48, v5')
    a('v_exp_f32 v4, v4')
    a('v_exp_f32 v5, v5')
    a('v_cvt_pk_bf16_f32 v5, v4, v5')
    a('v_lshlrev_b32 v4, 16, v5')
    a('v_and_b32 v5, 0xffff0000, v5')
    a('v_mul_f32 v5, v5, v4')
    a('v_mul_f32 v6, v6, v4')
    a('v_mul_f32 v5, %s, v5' % f2u(-LOG2E))
    a('v_mul_f32 v6, 0.15915494, v6')
    k.stamp(2)

    def direct2(d0, p0, d1, p1):
        for d, p in ((d0, p0), (d1, p1)):
            a('v_mul_f32 v%d, %s, v5' % (d + 2, f2u(p)))
            a('v_mul_f32 v%d, %s, v6' % (d + 3, f2u(p)))
        for d in (d0, d1):
            a('v_exp_f32 v%d, v%d' % (d + 2, d + 2))
            a('v_fract_f32 v%d, v%d' % (d + 3, d + 3))
        for d in (d0, d1):
            a('v_cos_f32 v%d, v%d' % (d, d + 3))
            a('v_sin_f32 v%d, v%d' % (d + 1, d + 3))
        for d in (d0, d1):
            a('v_pk_mul_f32 %s, %s, %s op_sel_hi:[1,0]' % (vr(d, 2), vr(d, 2), vr(d + 2, 2)))
    pk = [0]

    def put(row, src, conj=False):
        t = 36 + pk[0] % 4
        pk[0] += 1
        a('v_cvt_pk_bf16_f32 v%d, v%d, %sv%d' % (t, src, '-' if conj else '', src + 1))
        a('ds_write_b32 v3, v%d offset:%d' % (t, row * K1_RS))
    a('s_cmp_ge_u32 s3, 4')
    a('s_cbranch_scc1 k1_set1')
    direct2(12, 1.0, 16, 16.0)
    a('v_add_f32 v4, v4, v4')
    a('v_pk_mul_f32 v[8:9], v[8:9], v[4:5] op_sel_hi:[1,0]')
    a('v_mov_b32 v35, 0x3f80')
    a('ds_write_b32 v3, v35 offset:%d' % (16 * K1_RS))
    put(0, 8, True)
    put(17, 12)
    cmul(a, 8, 8, 16, 24)
    cmul(a, 20, 12, 12, 26)
    put(1, 8, True)
    put(18, 20)
    for i in range(2, 16):
        cmul(a, 8, 8, 16, 24)
        if i < 15:
            cmul(a, 20, 20, 12, 26)
        put(i, 8, True)
        if i < 15:
            put(17 + i, 20)
    a('s_branch k1_tabdone')
    a.label('k1_set1')
    direct2(12, 2.0, 16, 256.0)
    cmul(a, 14, 12, 12, 24)
    cmul(a, 20, 16, 16, 26)
    put(32, 16)
    cmul(a, 22, 16, 12, 24)
    cmul(a, 18, 14, 14, 26)
    put(41, 20)
    put(33, 22)
    seqB = []
    seqB.append((28, 20, 14, 42))
    for r in (43, 44, 45):
        seqB.append((28, 28, 14, r))
    seqB.append((20, 20, 16, 46))
    seqB.append((28, 20, 14, 47))
    for r in (48, 49, 50):
        seqB.append((28, 28, 14, r))
    seqA = [(22, 22, 12, r) for r in range(34, 41)]
    for i in range(max(len(seqA), len(seqB))):
        todo = []
        if i < len(seqA):
            todo.append(seqA[i] + (24,))
        if i < len(seqB):
            todo.append(seqB[i] + (26,))
        for d, x, y, r, t in todo:
            cmul(a, d, x, y, t)
        for d, x, y, r, t in todo:
            put(r, d)
    cmul(a, 30, 18, 18, 24)
    cmul(a, 20, 20, 16, 26)
    for tau in range(4):
        cmul(a, 22, 20, 18, 24)
        cmul(a, 28, 20, 30, 26)
        put(51 + 3 * tau, 20)
        if tau < 3:
            cmul(a, 20, 20, 16, 32)
        put(52 + 3 * tau, 22)
        put(53 + 3 * tau, 28)
    a.label('k1_tabdone')
    a('s_lshl_b32 s57, s45, 2')
    a('s_add_u32 s57, s57, %d' % K1_CNT)
    a('v_mov_b32 v10, s57')
    a('v_mov_b32 v11, 1')
    a('s_waitcnt lgkmcnt(0)')
    k.stamp(3)
    a('s_mov_b64 exec, 1')
    a('ds_add_u32 v10, v11')
    a.label('k1_spin')
    a('ds_read_b32 v11, v10')
    a('s_waitcnt lgkmcnt(0)')
    a('v_readfirstlane_b32 s58, v11')
    a('s_cmp_lt_u32 s58, 4')
    a('s_cbranch_scc1 k1_spin')
    a('s_mov_b64 exec, -1')
    k.stamp(4)
    for ks in range(8):
        a('ds_read_b128 %s, v40 offset:%d' % (vr(48 + 8 * ks, 4), 64 * ks))
        a('ds_read_b128 %s, v41 offset:%d' % (vr(52 + 8 * ks, 4), 64 * ks))
    a('s_lshl_b32 s57, s46, 12')
    a('s_add_u32 s57, s57, %d' % KX)
    a('v_lshrrev_b32 v12, 4, v0')
    for ks in range(8):
        a('v_mfma_f32_16x16x32_bf16 v[44:47], %s, %s, %s' % (vr(48 + 8 * ks, 4), vr(52 + 8 * ks, 4), 'v[44:47]' if ks else '0'))
    a('s_cmp_ge_u32 s51, 2')
    a('s_cbranch_scc1 k1_seg23')
    a('v_lshl_add_u32 v42, v12, 3, v42')
    a('s_cmp_eq_u32 s51, 1')
    a('s_cbranch_scc1 k1_seg1')
    a('v_cmp_eq_u32 vcc, 0, v0')
    a('v_cndmask_b32 v7, 0, v7, vcc')
    a('v_add_f32 v44, v44, v7')
    a('v_cvt_pk_bf16_f32 v44, v44, v45')
    a('v_cvt_pk_bf16_f32 v45, v46, v47')
    a('buffer_store_dwordx2 v[44:45], v42, %s, s57 offen' % WS)
    k.end('s3', WS)
    a.label('k1_seg1')
    a('v_cvt_pk_bf16_f32 v44, v44, v44')
    a('v_cvt_pk_bf16_f32 v45, v45, v46')
    a('buffer_store_dwordx2 v[44:45], v42, %s, s57 offen offset:512' % WS)
    k.end('s3', WS)
    a.label('k1_seg23')
    a('s_cmp_eq_u32 s51, 3')
    a('s_cbranch_scc1 k1_seg3')
    a('v_lshrrev_b32 v13, 1, v12')
    a('v_lshl_add_u32 v42, v13, 9, v42')
    a('v_and_b32 v13, 1, v12')
    a('v_lshl_add_u32 v42, v13, 4, v42')
    a('v_cvt_pk_bf16_f32 v48, v44, v44')
    a('v_cvt_pk_bf16_f32 v49, v44, v45')
    a('v_cvt_pk_bf16_f32 v50, v45, v45')
    a('v_cvt_pk_bf16_f32 v51, v46, v46')
    a('buffer_store_dwordx4 v[48:51], v42, %s, s57 offen offset:1024' % WS)
    k.end('s3', WS)
    a.label('k1_seg3')
    a('v_lshl_add_u32 v42, v12, 9, v42')
    a('v_cvt_pk_bf16_f32 v48, v44, v44')
    a('v_cvt_pk_bf16_f32 v49, v44, v44')
    a('v_cvt_pk_bf16_f32 v50, v44, v45')
    a('v_cvt_pk_bf16_f32 v51, v45, v45')
    a('v_cvt_pk_bf16_f32 v52, v45, v45')
    a('v_cvt_pk_bf16_f32 v53, v45, v45')
    a('v_cvt_pk_bf16_f32 v54, v46, v46')
    a('v_cvt_pk_bf16_f32 v55, v46, v46')
    a('buffer_store_dwordx4 v[48:51], v42, %s, s57 offen offset:2048' % WS)
    a('buffer_store_dwordx4 v[52:55], v42, %s, s57 offen offset:2064' % WS)
    k.end('s3', WS)

    a.label('k1_g')
    a('s_mov_b32 s48, %s' % f2u(-LOG2E))
    a('s_mov_b32 s49, 0x05040100')
    a('s_mov_b32 s50, 0x07060302')
    for r in range(32, 40):
        a('v_mov_b32 v%d, 0' % r)
    k.stamp(1)
    a('v_lshlrev_b32 v24, 16, v4')
    a('v_and_b32 v25, 0xffff0000, v4')
    a('v_lshlrev_b32 v26, 16, v5')
    a('v_and_b32 v27, 0xffff0000, v5')
    for r in range(4):
        a('v_mul_f32 v%d, s48, v%d' % (28 + r, 24 + r))
    for r in range(4):
        a('v_exp_f32 v%d, v%d' % (28 + r, 28 + r))
    for r in range(4):
        a('v_add_f32 v%d, 1.0, v%d' % (28 + r, 28 + r))
    for r in range(4):
        a('v_min_f32 v%d, 0x7f000000, v%d' % (28 + r, 28 + r))
    for r in range(4):
        a('v_rcp_f32 v%d, v%d' % (40 + r, 28 + r))
    for r in range(4):
        a('v_mul_f32 v%d, v%d, v%d' % (44 + r, 24 + r, 40 + r))
    for r in range(4):
        a('v_fma_f32 v%d, -v%d, v%d, v%d' % (24 + r, 44 + r, 28 + r, 24 + r))
    for r in range(4):
        a('v_fmac_f32 v%d, v%d, v%d' % (44 + r, 24 + r, 40 + r))
    a('v_cvt_pk_bf16_f32 v4, v44, v45')
    a('v_cvt_pk_bf16_f32 v5, v46, v47')
    for jp in range(2):
        lo, hi = 8 + 8 * jp, 12 + 8 * jp
        for q in range(4):
            a('v_perm_b32 v%d, v%d, v%d, s49' % (24 + 2 * q, hi + q, lo + q))
            a('v_perm_b32 v%d, v%d, v%d, s50' % (25 + 2 * q, hi + q, lo + q))
        for q in range(8):
            a('v_dot2c_f32_bf16 v%d, v%d, v%d' % (32 + q, 24 + q, 4 + jp))
    k.stamp(2)
    for q in range(4):
        a('v_permlane32_swap_b32 v%d, v%d' % (32 + q, 36 + q))
    for q in range(4):
        a('v_add_f32 v%d, v%d, v%d' % (32 + q, 32 + q, 36 + q))
    a('v_permlane16_swap_b32 v32, v34')
    a('v_permlane16_swap_b32 v33, v35')
    a('v_add_f32 v32, v32, v34')
    a('v_add_f32 v33, v33, v35')
    for sh in (8, 4, 2):
        a('v_add_f32_dpp v32, v32, v32 row_ror:%d row_mask:0xf bank_mask:0xf' % sh)
        a('v_add_f32_dpp v33, v33, v33 row_ror:%d row_mask:0xf bank_mask:0xf' % sh)
    a('v_and_b32 v1, 1, v0')
    a('v_lshrrev_b32 v2, 4, v0')
    a('v_lshlrev_b32 v1, 5, v1')
    a('v_lshl_add_u32 v1, v2, 3, v1')
    a('s_lshl_b32 s51, s43, 6')
    a('s_add_u32 s51, s51, %d' % K1_GP)
    a('v_add_u32 v1, s51, v1')
    a('ds_write_b64 v1, v[32:33]')
    a('v_mov_b32 v10, %d' % (K1_CNT + 8))
    a('v_mov_b32 v11, 1')
    a('s_waitcnt lgkmcnt(0)')
    a('s_mov_b64 exec, 1')
    a('ds_add_rtn_u32 v11, v10, v11')
    a('v_readfirstlane_b32 s52, v11')
    a('s_cmp_lg_u32 s52, 3')
    a('s_cbranch_scc1 k1_gend')
    a('s_mov_b64 exec, 0xffff')
    a('v_lshlrev_b32 v1, 2, v0')
    a('v_add_u32 v2, %d, v1' % K1_GP)
    a('ds_read2_b32 v[4:5], v2 offset0:0 offset1:16')
    a('ds_read2_b32 v[6:7], v2 offset0:32 offset1:48')
    a('s_lshr_b32 s53, s44, 5')
    a('s_cmp_eq_u32 s53, 1')
    a('s_cselect_b32 s54, 1.0, 0')
    a('s_cmp_eq_u32 s53, 4')
    a('s_cselect_b32 s54, 1.0, s54')
    a('s_lshl_b32 s55, s44, 6')
    a('s_add_u32 s55, s55, %d' % MOD)
    a('v_add_f32 v4, v4, v5')
    a('v_add_f32 v6, v6, v7')
    a('v_add_f32 v4, v4, v6')
    a('v_cvt_pk_bf16_f32 v4, v4, v4')
    a('v_lshlrev_b32 v4, 16, v4')
    a('v_add_f32 v4, s54, v4')
    a('v_cvt_pk_bf16_f32 v4, v4, v4')
    a('v_lshlrev_b32 v4, 16, v4')
    a('buffer_store_dword v4, v1, %s, s55 offen' % WS)
    a.label('k1_gend')
    k.end('s3', WS)

    a.label('k1_t')
    a('s_mov_b32 s49, 0x05040100')
    a('s_mov_b32 s50, 0x07060302')
    a('v_lshlrev_b32 v1, 15, v3')
    a('v_lshl_add_u32 v1, v2, 4, v1')
    a('s_lshl_b32 s46, s45, 19')
    a('s_lshl_b32 s47, s44, 7')
    a('s_add_u32 s46, s46, s47')
    a('s_add_u32 s46, s46, %d' % XT)
    k.stamp(1)
    for q in range(4):
        for e in range(2):
            o = 40 + 8 * q + 4 * e
            for j in range(4):
                a('v_perm_b32 v%d, v%d, v%d, %s' % (o + j, 8 + 4 * (2 * j + 1) + q, 8 + 4 * (2 * j) + q, 's50' if e else 's49'))
            a('buffer_store_dwordx4 %s, v1, %s, s46 offen offset:%d' % (vr(o, 4), WS, 64 * e))
        if q < 3:
            a('s_add_u32 s46, s46, 8192')
    k.end('s3', WS)

    a.label('k1_s')
    a('s_mov_b32 s48, 0x3f803f80')
    for r in range(4, 8):
        a('v_mov_b32 v%d, 0' % r)
    a('v_lshrrev_b32 v1, 1, v2')
    a('v_lshlrev_b32 v1, 12, v1')
    a('v_and_b32 v2, 1, v2')
    a('v_lshl_add_u32 v1, v2, 3, v1')
    a('s_lshl_b32 s44, s42, 4')
    a('s_add_u32 s44, s44, %d' % STATS)
    k.stamp(1)
    for r in range(32):
        a('v_dot2c_f32_bf16 v%d, s48, v%d' % (4 + 2 * (r & 1), 8 + r))
        a('v_dot2c_f32_bf16 v%d, v%d, v%d' % (5 + 2 * (r & 1), 8 + r, 8 + r))
    a('v_add_f32 v4, v4, v6')
    a('v_add_f32 v5, v5, v7')
    for m in ('quad_perm:[1,0,3,2]', 'quad_perm:[2,3,0,1]', 'row_half_mirror'):
        a('v_add_f32_dpp v4, v4, v4 %s row_mask:0xf bank_mask:0xf' % m)
        a('v_add_f32_dpp v5, v5, v5 %s row_mask:0xf bank_mask:0xf' % m)
    a('v_mul_f32 v4, %s, v4' % f2u(1 / 512))
    a('v_mul_f32 v5, %s, v5' % f2u(1 / 512))
    a('v_fma_f32 v5, -v4, v4, v5')
    a('v_max_f32 v5, 0, v5')
    a('v_cvt_pk_bf16_f32 v5, v4, v5')
    a('v_lshlrev_b32 v4, 16, v5')
    a('v_and_b32 v5, 0xffff0000, v5')
    a('v_add_f32 v5, %s, v5' % f2u(1e-5))
    a('v_cvt_pk_bf16_f32 v5, v5, v5')
    a('v_lshlrev_b32 v5, 16, v5')
    a('v_sqrt_f32 v5, v5')
    a('v_cvt_pk_bf16_f32 v5, v5, v5')
    a('v_lshlrev_b32 v5, 16, v5')
    a('v_rcp_f32 v6, v5')
    a('v_cmp_eq_u32 vcc, 0, v3')
    a('v_mul_f32 v7, -v4, v6')
    a('s_and_b64 exec, exec, vcc')
    a('buffer_store_dwordx2 v[6:7], v1, %s, s44 offen' % WS)
    k.end('s3', WS)
    a.label('k1_exit')
    a('s_endpgm')
    return dict(name='k1_kernel', grid=256, block=960, lds=K1_LDS, vgpr=112, accum=112)


K2_CS = 4160
K2_KCH = 4 * K2_CS
K2_HB = 2 * K2_KCH
K2_HCH = 4608
K2_RED = K2_HB + 2 * K2_HCH
K2_SP = K2_RED + 16384
K2_LDS = K2_SP + 2048


def gen_k2(a):
    k = K(a, 1)
    WS = 's[36:39]'
    a.label('k2_kernel')
    a('s_cmp_ge_u32 s2, 256')
    a('s_cbranch_scc1 k2_exit')
    k.begin()
    a('s_load_dwordx2 s[36:37], s[0:1], 120')
    a('s_load_dwordx4 s[20:23], s[0:1], 64')
    a('s_load_dwordx2 s[24:25], s[0:1], 80')
    a('v_lshrrev_b32 v1, 6, v0')
    a('v_and_b32 v2, 255, v0')
    a('v_readfirstlane_b32 s3, v1')
    a('v_and_b32 v0, 63, v0')
    a('s_mov_b32 s38, %d' % WS_SRD)
    a('s_mov_b32 s39, 0x20000')
    a('s_and_b32 s40, s2, 7')
    a('s_lshr_b32 s41, s2, 3')
    a('s_lshl_b32 s42, s40, 5')
    a('s_add_u32 s42, s42, s41')
    a('s_lshl_b32 s43, s42, 13')
    a('v_lshlrev_b32 v3, 4, v2')
    a('v_and_b32 v4, 15, v0')
    a('v_lshrrev_b32 v5, 4, v0')
    a('s_cmp_ge_u32 s3, 4')
    a('s_cbranch_scc1 k2_side')
    a('v_lshrrev_b32 v6, 2, v2')
    a('v_and_b32 v7, 3, v2')
    a('v_lshlrev_b32 v6, 7, v6')
    a('v_lshl_add_u32 v6, v7, 4, v6')
    a('s_add_u32 s44, s43, %d' % XT)
    a('s_mov_b32 s45, %d' % STATS)
    a('s_mov_b32 s46, %d' % (STATS + 4096))
    a('s_mov_b32 s47, %d' % (STATS + 8192))
    a('s_mov_b32 s48, %d' % (STATS + 12288))
    a('s_lshl_b32 s49, s42, 3')
    a('s_add_u32 s49, s49, %d' % MOD)
    a('s_lshr_b32 s50, s3, 1')
    a('s_and_b32 s51, s3, 1')
    a('s_waitcnt lgkmcnt(0)')
    a('buffer_load_dwordx4 v[16:19], v6, %s, s44 offen' % WS)
    a('buffer_load_dwordx4 v[20:23], v6, %s, s44 offen offset:64' % WS)
    for j in range(4):
        a('buffer_load_dwordx4 %s, v3, %s, s%d offen' % (vr(24 + 4 * j, 4), WS, 45 + j))
    a('s_buffer_load_dwordx2 s[52:53], %s, s49' % WS)
    a('s_add_u32 s58, s49, 2048')
    a('s_buffer_load_dwordx2 s[54:55], %s, s58' % WS)
    a('s_add_u32 s59, s49, 4096')
    a('s_buffer_load_dwordx2 s[56:57], %s, s59' % WS)
    a('v_lshrrev_b32 v6, 1, v4')
    a('v_lshlrev_b32 v6, 7, v6')
    a('v_and_b32 v7, 1, v4')
    a('v_lshl_add_u32 v6, v7, 5, v6')
    a('v_lshl_add_u32 v6, v5, 3, v6')
    a('s_lshl_b32 s60, s50, 6')
    a('s_lshl_b32 s61, s51, 10')
    a('s_add_u32 s60, s60, s61')
    a('s_add_u32 s60, s60, s44')
    a('s_add_u32 s61, s60, 4096')
    for kk in range(4):
        a('buffer_load_dwordx2 %s, v6, %s, s%d offen offset:%d' % (vr(8 + 2 * kk, 2), WS, 60 + kk // 2, 2048 * (kk & 1)))
    a('v_lshrrev_b32 v6, 5, v0')
    a('v_mul_u32_u24 v6, %d, v6' % K2_HCH)
    a('v_and_b32 v7, 31, v0')
    a('v_lshl_add_u32 v6, v7, 4, v6')
    for r in range(40, 44):
        a('v_mov_b32 v%d, 0' % r)
    a('ds_write_b128 v6, v[40:43] offset:%d' % K2_HB)
    a('v_and_b32 v6, 3, v4')
    a('v_sub_u32 v6, 3, v6')
    a('v_mul_u32_u24 v6, %d, v6' % K2_CS)
    a('v_lshrrev_b32 v7, 2, v4')
    a('v_lshl_add_u32 v6, v7, 3, v6')
    a('v_lshlrev_b32 v7, 4, v5')
    a('v_sub_u32 v6, v6, v7')
    a('s_mul_i32 s62, s50, %d' % K2_KCH)
    a('s_lshl_b32 s63, s51, 8')
    a('s_add_u32 s62, s62, s63')
    a('s_add_u32 s62, s62, 56')
    a('v_add_u32 v1, s62, v6')
    a('v_lshl_add_u32 v6, v4, 5, v7')
    a('s_mul_i32 s62, s50, %d' % K2_HCH)
    a('s_sub_u32 s62, s62, s63')
    a('s_add_u32 s62, s62, %d' % (K2_HB + 480 - 192))
    a('v_add_u32 v2, s62, v6')
    a('s_lshl_b32 s62, s42, 1')
    a('s_add_u32 s62, s62, s50')
    a('s_and_b32 s63, s62, 7')
    a('v_and_b32 v6, 7, v4')
    a('v_xor_b32 v6, s63, v6')
    a('v_lshlrev_b32 v6, 5, v6')
    a('v_lshl_add_u32 v6, v5, 3, v6')
    a('v_lshrrev_b32 v7, 3, v4')
    a('v_lshl_add_u32 v4, v7, 17, v6')
    a('s_lshl_b32 s62, s62, 8')
    a('s_lshl_b32 s63, s51, 18')
    a('s_add_u32 s62, s62, s63')
    a('s_add_u32 s62, s62, %d' % X1T)
    a('v_lshlrev_b32 v5, 4, v0')
    a('s_lshl_b32 s63, s3, 12')
    a('s_add_u32 s63, s63, %d' % K2_RED)
    a('v_add_u32 v6, s63, v5')
    a('s_xor_b32 s64, s3, 1')
    a('s_lshl_b32 s64, s64, 12')
    a('s_add_u32 s64, s64, %d' % K2_RED)
    a('v_add_u32 v7, s64, v5')
    a('s_waitcnt lgkmcnt(0)')
    a('v_mov_b32 v40, s52')
    a('v_mov_b32 v41, s53')
    a('s_cmp_eq_u32 s50, 0')
    a('s_cselect_b32 s56, s56, s57')
    k.stamp(1)
    for q in range(4):
        a('v_lshlrev_b32 v%d, 16, v%d' % (44 + 4 * q, 16 + q))
        a('v_lshlrev_b32 v%d, 16, v%d' % (45 + 4 * q, 20 + q))
        a('v_and_b32 v%d, 0xffff0000, v%d' % (46 + 4 * q, 16 + q))
        a('v_and_b32 v%d, 0xffff0000, v%d' % (47 + 4 * q, 20 + q))
    for t in range(8):
        p = vr(44 + 2 * t, 2)
        s = vr(24 + 2 * t, 2)
        a('v_pk_fma_f32 %s, %s, %s, %s op_sel:[0,0,1] op_sel_hi:[1,0,1]' % (p, p, s, s))
    for t in range(8):
        p = vr(44 + 2 * t, 2)
        a('v_pk_fma_f32 %s, %s, s[54:55], v[40:41]' % (p, p))
    for ch in range(2):
        for q in range(4):
            a('v_cvt_pk_bf16_f32 v%d, v%d, v%d' % (16 + 4 * ch + q, 44 + 2 * (7 - 2 * q) + ch, 44 + 2 * (6 - 2 * q) + ch))
        a('ds_write_b128 v3, %s offset:%d' % (vr(16 + 4 * ch, 4), K2_HB + 512 + ch * K2_HCH))
    a('s_waitcnt lgkmcnt(0)')
    k.stamp(2)
    a('s_barrier')
    k.stamp(3)
    ACC = 16

    def reads(j):
        base = 48 + 64 * (j & 1)
        out = []
        for n in range(8):
            out.append('ds_read_b64 %s, v1 offset:%d' % (vr(base + 8 * n, 2), 64 * j + 512 * n))
            out.append('ds_read_b64 %s, v1 offset:%d' % (vr(base + 8 * n + 2, 2), 64 * j + 512 * n + 8))
            out.append('ds_read_b128 %s, v2 offset:%d' % (vr(base + 8 * n + 4, 4), 64 * (3 - j) + 512 * n))
        return out
    pairs = []
    for n in range(8):
        lo = min(n, 7 - n)
        for o in range(lo + 1):
            pairs.append((n, o))
            if o != n:
                pairs.append((o, n))
    assert len(pairs) == 36
    first = reads(0)
    for r in first[:12]:
        a(r)
    queue = first[12:]
    seen = set()
    for j in range(4):
        if j < 3:
            queue += reads(j + 1)
        base = 48 + 64 * (j & 1)
        for i, (dl, tp) in enumerate(pairs):
            tau = dl + tp
            acc = vr(ACC + 4 * tau, 4)
            a('v_mfma_f32_16x16x32_bf16 %s, %s, %s, %s' % (acc, vr(base + 8 * dl, 4), vr(base + 8 * tp + 4, 4), acc if tau in seen else '0'))
            seen.add(tau)
            n_issue = 1 if (j == 0 or i % 3 != 2) else 0
            for _ in range(n_issue):
                if queue:
                    a(queue.pop(0))
        assert not queue
    k.stamp(4)
    a('s_cmp_eq_u32 s51, 1')
    a('s_cbranch_scc1 k2_tail1')
    for half in range(2):
        if half:
            a.label('k2_tail1')
        for kk in range(4):
            a('ds_write_b128 v6, %s offset:%d' % (vr(ACC + 4 * (2 * kk + 1 - half), 4), 1024 * kk))
        for kk in range(4):
            a('v_lshlrev_b32 v%d, 16, v%d' % (64 + 4 * kk, 8 + 2 * kk))
            a('v_and_b32 v%d, 0xffff0000, v%d' % (65 + 4 * kk, 8 + 2 * kk))
            a('v_lshlrev_b32 v%d, 16, v%d' % (66 + 4 * kk, 9 + 2 * kk))
            a('v_and_b32 v%d, 0xffff0000, v%d' % (67 + 4 * kk, 9 + 2 * kk))
        a('s_waitcnt lgkmcnt(0)')
        a('s_barrier')
        for kk in range(4):
            a('ds_read_b128 %s, v7 offset:%d' % (vr(48 + 4 * kk, 4), 1024 * kk))
        for kk in range(4):
            own = ACC + 4 * (2 * kk + half)
            for e in (0, 2):
                a('v_pk_fma_f32 %s, %s, s[56:57], %s op_sel_hi:[1,0,1]' % (vr(64 + 4 * kk + e, 2), vr(own + e, 2), vr(64 + 4 * kk + e, 2)))
        for kk in range(4):
            for e in (0, 2):
                a('v_pk_fma_f32 %s, %s, s[56:57], %s op_sel_hi:[1,0,1]' % (vr(64 + 4 * kk + e, 2), vr(48 + 4 * kk + e, 2), vr(64 + 4 * kk + e, 2)))
            a('v_cvt_pk_bf16_f32 v%d, v%d, v%d' % (8 + 2 * kk, 64 + 4 * kk, 65 + 4 * kk))
            a('v_cvt_pk_bf16_f32 v%d, v%d, v%d' % (9 + 2 * kk, 66 + 4 * kk, 67 + 4 * kk))
            a('buffer_store_dwordx2 %s, v4, %s, s62 offen' % (vr(8 + 2 * kk, 2), WS))
            if kk < 3:
                a('s_add_u32 s62, s62, 524288')
        k.end('s3', WS)

    a.label('k2_side')
    a('s_add_u32 s44, s43, %d' % (KX - 8))
    a('s_add_u32 s45, s44, 4096')
    a('s_and_b32 s46, s3, 3')
    a('s_waitcnt lgkmcnt(0)')
    for ch in range(2):
        a('buffer_load_dwordx4 %s, v3, %s, s%d offen offset:8' % (vr(12 + 8 * ch, 4), WS, 44 + ch))
        a('buffer_load_dwordx2 %s, v3, %s, s%d offen' % (vr(8 + 8 * ch, 2), WS, 44 + ch))
    a('s_cmp_ge_u32 s42, 172')
    a('s_cbranch_scc1 k2_wdload')
    a('s_lshr_b32 s47, s42, 2')
    a('s_and_b32 s48, s42, 3')
    a('s_lshl_b32 s49, s48, 2')
    a('s_add_u32 s49, s49, s46')
    a('s_lshl_b32 s50, s49, 5')
    a('v_lshlrev_b32 v6, 2, v5')
    a('v_add_u32 v6, s50, v6')
    a('v_lshlrev_b32 v7, 2, v6')
    a('v_mul_u32_u24 v6, 2752, v6')
    a('v_lshl_add_u32 v6, v4, 2, v6')
    a('s_lshl_b32 s51, s47, 6')
    a('s_add_u32 s51, s51, 1376')
    a('v_add_u32 v24, s51, v6')
    a('v_add_u32 v25, %d, v24' % (2 * 2752))
    a('v_add_u32 v26, %d, v24' % (16 * 2752))
    a('v_add_u32 v27, %d, v24' % (18 * 2752))
    for ty in range(2):
        for kap in range(8):
            a('global_load_dword v%d, v%d, s[%d:%d] offset:%d' % (64 + 8 * ty + kap, 24 + kap // 2, 20 + 2 * ty, 21 + 2 * ty, 1376 if kap & 1 else -1376))
    a('s_mov_b32 s52, %d' % (MOD + 3 * 2048))
    a('buffer_load_dwordx4 v[80:83], v7, %s, s52 offen offset:2048' % WS)
    a('buffer_load_dwordx4 v[84:87], v7, %s, s52 offen offset:2112' % WS)
    a('buffer_load_dwordx4 v[88:91], v7, %s, s52 offen' % WS)
    a('buffer_load_dwordx4 v[92:95], v7, %s, s52 offen offset:64' % WS)

    def kcopy():
        a('v_lshrrev_b32 v28, 1, v4')
        a('v_mul_u32_u24 v28, %d, v28' % K2_CS)
        a('v_and_b32 v29, 1, v4')
        a('v_lshl_add_u32 v28, v29, 4, v28')
        for r in range(32, 36):
            a('v_mov_b32 v%d, 0' % r)
        a('ds_write_b128 v28, v[32:35]')
        a('v_cmp_ne_u32 vcc, 0, v2')
        k.stamp(1)
        for ch in range(2):
            P, D = 8 + 8 * ch, 12 + 8 * ch
            o = 32 + K2_KCH * ch
            T = 36 + 12 * ch
            a('ds_write_b128 v3, %s offset:%d' % (vr(D, 4), o))
            a('v_cndmask_b32 v%d, 0, v%d, vcc' % (P, P))
            a('v_cndmask_b32 v%d, 0, v%d, vcc' % (T + 4, P + 1))
            seq = [P, T + 4, D, D + 1, D + 2, D + 3]
            for q in range(4):
                a('v_alignbyte_b32 v%d, v%d, v%d, 2' % (T + q, seq[q + 2], seq[q + 1]))
            a('ds_write_b128 v3, %s offset:%d' % (vr(T, 4), o + K2_CS))
            for q in range(3):
                a('v_mov_b32 v%d, v%d' % (T + 5 + q, D + q))
            a('ds_write_b128 v3, %s offset:%d' % (vr(T + 4, 4), o + 2 * K2_CS))
            for q in range(4):
                a('v_alignbyte_b32 v%d, v%d, v%d, 2' % (T + 8 + q, seq[q + 1], seq[q]))
            a('ds_write_b128 v3, %s offset:%d' % (vr(T + 8, 4), o + 3 * K2_CS))
        a('s_waitcnt lgkmcnt(0)')
        k.stamp(2)
        a('s_barrier')
    kcopy()
    a('s_mov_b32 s53, 0x3f803f80')
    for r in range(8, 16):
        a('v_mov_b32 v%d, 0' % r)
    a('v_lshrrev_b32 v6, 2, v4')
    a('v_lshlrev_b32 v6, 14, v6')
    a('v_and_b32 v7, 3, v4')
    a('v_lshl_add_u32 v6, v7, 6, v6')
    a('v_lshl_add_u32 v6, v5, 8, v6')
    a('s_lshl_b32 s54, s47, 16')
    a('s_lshl_b32 s55, s49, 10')
    a('s_add_u32 s54, s54, s55')
    a('s_add_u32 s54, s54, %d' % WP)
    k.stamp(3)
    for ty in range(2):
        for kap in range(8):
            src = 64 + 8 * ty + kap
            p = 16 + 2 * kap
            a('v_lshlrev_b32 v%d, 16, v%d' % (p, src))
            a('v_and_b32 v%d, 0xffff0000, v%d' % (p + 1, src))
        for kap in range(8):
            p = vr(16 + 2 * kap, 2)
            sel = kap & 1
            a('v_pk_fma_f32 %s, %s, %s, %s op_sel:[%d,0,0] op_sel_hi:[%d,1,1]' % (vr(12 + 2 * ty, 2), vr(88 + (kap & ~1), 2), p, vr(12 + 2 * ty, 2), sel, sel))
            a('v_pk_mul_f32 %s, %s, %s op_sel:[%d,0] op_sel_hi:[%d,1]' % (p, vr(80 + (kap & ~1), 2), p, sel, sel))
        for e in range(2):
            r = 2 * ty + e
            o = 32 + 4 * r
            for q in range(4):
                a('v_cvt_pk_bf16_f32 v%d, v%d, v%d' % (o + q, 16 + 4 * q + e, 18 + 4 * q + e))
            a('buffer_store_dwordx4 %s, v6, %s, s54 offen offset:%d%s' % (vr(o, 4), WS, 16 * r, OPT.get('wp_sc', '')))
            for q in range(4):
                a('v_dot2c_f32_bf16 v%d, s53, v%d' % (8 + r, o + q))
    for b in (8, 12):
        a('v_permlane32_swap_b32 v%d, v%d' % (b, b + 2))
        a('v_permlane32_swap_b32 v%d, v%d' % (b + 1, b + 3))
    for b in (8, 12):
        a('v_add_f32 v%d, v%d, v%d' % (b, b, b + 2))
        a('v_add_f32 v%d, v%d, v%d' % (b + 1, b + 1, b + 3))
    for b in (8, 12):
        a('v_permlane16_swap_b32 v%d, v%d' % (b, b + 1))
    a('v_add_f32 v8, v8, v9')
    a('v_add_f32 v9, v12, v13')
    a('v_lshlrev_b32 v7, 5, v4')
    a('v_lshl_add_u32 v7, v5, 3, v7')
    a('s_lshl_b32 s55, s46, 9')
    a('v_add_u32 v10, s55, v7')
    a('ds_write_b64 v10, v[8:9] offset:%d' % K2_SP)
    a('s_waitcnt lgkmcnt(0)')
    k.stamp(4)
    a('s_barrier')
    a('s_cmp_lg_u32 s46, 0')
    a('s_cbranch_scc1 k2_sideend')
    a('v_lshlrev_b32 v7, 3, v0')
    for w in range(4):
        a('ds_read_b64 %s, v7 offset:%d' % (vr(8 + 2 * w, 2), K2_SP + 512 * w))
    a('s_mul_i32 s55, s48, %d' % CSB_STRIDE)
    a('s_lshl_b32 s56, s47, 9')
    a('s_add_u32 s55, s55, s56')
    a('s_add_u32 s55, s55, %d' % CSB)
    a('v_pk_add_f32 v[8:9], v[8:9], v[10:11]')
    a('v_pk_add_f32 v[12:13], v[12:13], v[14:15]')
    a('v_pk_add_f32 v[8:9], v[8:9], v[12:13]')
    a('buffer_store_dwordx2 v[8:9], v7, %s, s55 offen' % WS)
    a.label('k2_sideend')
    k.end('s3', WS)
    a.label('k2_wdload')
    a('s_sub_u32 s47, s42, 172')
    a('s_lshl_b32 s47, s47, 2')
    a('s_add_u32 s47, s47, s46')
    a('v_lshlrev_b32 v6, 13, v5')
    a('v_lshl_add_u32 v6, v4, 3, v6')
    a('v_add_u32 v6, 4096, v6')

    def wd_loads():
        a('s_and_b32 s48, s47, 7')
        a('s_lshr_b32 s49, s47, 3')
        a('s_lshl_b32 s50, s49, 15')
        a('s_lshl_b32 s51, s48, 7')
        a('s_add_u32 s50, s50, s51')
        a('v_add_u32 v7, s50, v6')
        for kap in range(8):
            a('global_load_dwordx2 %s, v7, s[24:25] offset:%d' % (vr(64 + 2 * kap, 2), 1024 * kap - 4096))
    wd_loads()
    kcopy()
    a('s_mov_b32 s53, 0x05040100')
    a('s_mov_b32 s54, 0x07060302')
    a('v_lshlrev_b32 v8, 4, v0')

    def wd_compute():
        a('s_mul_i32 s55, s48, %d' % WD_STRIDE)
        a('s_lshl_b32 s56, s49, 12')
        a('s_add_u32 s55, s55, s56')
        a('s_add_u32 s55, s55, %d' % WD)
        for c in range(4):
            for q in range(4):
                a('v_perm_b32 v%d, v%d, v%d, %s' % (16 + 4 * c + q, 64 + 2 * (2 * q + 1) + c // 2, 64 + 2 * (2 * q) + c // 2, 's54' if c & 1 else 's53'))
            a('buffer_store_dwordx4 %s, v8, %s, s55 offen offset:%d%s' % (vr(16 + 4 * c, 4), WS, 1024 * c, OPT.get('wp_sc', '')))
    wd_compute()
    a('s_add_u32 s47, s47, 336')
    a('s_cmp_ge_u32 s47, 344')
    a('s_cbranch_scc1 k2_wdend')
    wd_loads()
    wd_compute()
    a.label('k2_wdend')
    k.end('s3', WS)
    a.label('k2_exit')
    a('s_endpgm')
    return dict(name='k2_kernel', grid=256, block=512, lds=K2_LDS, vgpr=176, accum=176)


K3_ST = 131072
K3_CB = K3_ST + 1024
K3_LDS = K3_CB + 4 * 512


def gen_k3(a):
    k = K(a, 2)
    WS = 's[36:39]'
    a.label('k3_kernel')
    a('s_load_dwordx2 s[36:37], s[0:1], 120')
    a('s_and_b32 s40, s2, 7')
    a('s_lshr_b32 s41, s2, 3')
    a('s_and_b32 s42, s40, 1')
    a('s_lshl_b32 s42, s42, 3')
    a('s_and_b32 s43, s41, 7')
    a('s_add_u32 s42, s42, s43')
    a('s_lshr_b32 s43, s40, 1')
    a('s_lshl_b32 s43, s43, 2')
    a('s_lshr_b32 s44, s41, 3')
    a('s_add_u32 s43, s43, s44')
    a('s_cmp_ge_u32 s2, 256')
    a('s_cbranch_scc1 k3_exit')
    a('s_cmp_ge_u32 s43, 15')
    a('s_cbranch_scc1 k3_exit')
    k.begin()
    a('v_lshrrev_b32 v1, 6, v0')
    a('v_and_b32 v0, 63, v0')
    a('v_readfirstlane_b32 s3, v1')
    a('s_mov_b32 s38, %d' % WS_SRD)
    a('s_mov_b32 s39, 0x20000')
    a('v_lshlrev_b32 v1, 4, v0')
    a('s_mul_i32 s45, s43, 12')
    a('s_mul_i32 s46, s3, 3')
    a('s_add_u32 s45, s45, s46')
    a('s_lshl_b32 s46, s45, 14')
    a('s_add_u32 s46, s46, %d' % WP)
    a('s_add_u32 s47, s46, 16384')
    a('s_add_u32 s48, s46, 32768')
    a('s_lshl_b32 s49, s42, 17')
    a('s_lshl_b32 s50, s3, 11')
    a('s_add_u32 s49, s49, s50')
    a('s_add_u32 s49, s49, %d' % X1T)
    a('s_mov_b32 m0, s50')
    a('s_waitcnt lgkmcnt(0)')

    def issue(s):
        a('buffer_load_dwordx4 v1, %s, s49 offen lds' % WS, tag='x%d' % s)
        a('buffer_load_dwordx4 v1, %s, s49 offen offset:1024 lds' % WS, tag='x%d' % s)
        for c in range(3):
            a('buffer_load_dwordx4 %s, v1, %s, s%d offen offset:%d' % (ar(12 * s + 4 * c, 4), WS, 46 + c, 1024 * (s & 3)))
        if s < 15:
            a('s_add_u32 s49, s49, 8192')
            a('s_add_u32 m0, m0, 8192')
            if s & 3 == 3:
                for c in range(3):
                    a('s_add_u32 s%d, s%d, 4096' % (46 + c, 46 + c))
    NPRE = 11
    issue(0)
    a('v_lshlrev_b32 v2, 3, v0')
    a('s_lshl_b32 s51, s45, 7')
    a('s_add_u32 s51, s51, %d' % CSB)
    for q in range(4):
        a('buffer_load_dwordx2 %s, v2, %s, s51 offen' % (vr(200 + 2 * q, 2), WS))
        if q < 3:
            a('s_add_u32 s51, s51, %d' % CSB_STRIDE)
    for s in range(1, NPRE):
        issue(s)
    a('v_lshrrev_b32 v3, 2, v0')
    a('v_and_b32 v4, 3, v0')
    a('v_lshlrev_b32 v4, 3, v4')
    a('v_lshl_add_u32 v4, v3, 8, v4')
    a('v_and_b32 v3, 7, v3')
    a('s_lshl_b32 s52, s3, 1')
    a('v_xor_b32 v3, s52, v3')
    for u in range(8):
        a('v_xor_b32 v5, %d, v3' % u)
        a('v_lshl_add_u32 v%d, v5, 5, v4' % (8 + u))
    for r in range(4, 8):
        a('v_mov_b32 v%d, 0' % r)
    a('s_mov_b32 s53, 0x3f803f80')
    a('v_pk_add_f32 v[200:201], v[200:201], v[202:203]')
    a('v_pk_add_f32 v[204:205], v[204:205], v[206:207]')
    a('v_and_b32 v3, 2, v0')
    a('v_cmp_eq_u32 vcc, 0, v3')
    a('v_mov_b32 v202, %s' % f2u(-LOG2E))
    a('v_cndmask_b32 v202, 1.0, v202, vcc')
    a('v_pk_add_f32 v[200:201], v[200:201], v[204:205]')
    a('s_lshl_b32 s54, s3, 9')
    a('s_add_u32 s54, s54, %d' % K3_CB)
    a('v_pk_mul_f32 v[200:201], v[200:201], v[202:203] op_sel_hi:[1,0]')
    a('v_lshl_add_u32 v2, v0, 2, s54')
    a('ds_write2st64_b32 v2, v200, v201 offset0:0 offset1:1')
    a('v_and_b32 v2, 48, v0')
    a('v_add_u32 v2, s54, v2')
    a('s_waitcnt lgkmcnt(0)')
    CS, BI = 200, 212
    for c in range(3):
        a('ds_read_b128 %s, v2 offset:%d' % (vr(CS + 4 * c, 4), 64 * c))
        a('ds_read_b128 %s, v2 offset:%d' % (vr(BI + 4 * c, 4), 256 + 64 * c))
    k.stamp(1)
    ACC = 16
    XB = 112

    def reads(s):
        base = XB + 32 * (s & 1)
        out = []
        for u in range(8):
            for hf in range(2):
                out.append('ds_read_b64_tr_b16 %s, v%d offset:%d' % (vr(base + 4 * u + 2 * hf, 2), 8 + u, (s & 7) * 8192 + hf * 4096))
        return out
    a.wait_tag('x0')
    a('s_barrier')
    k.stamp(2)
    for r in reads(0):
        a(r)
    for s in range(16):
        queue = []
        if s < 15:
            a.wait_tag('x%d' % (s + 1))
            a('s_barrier')
            if s + NPRE < 16:
                issue(s + NPRE)
            if s == 7:
                for u in range(8):
                    a('v_add_u32 v%d, 0x10000, v%d' % (8 + u, 8 + u))
            queue = reads(s + 1)
        base = XB + 32 * (s & 1)
        dots = []
        for u in range(2):
            for q in range(4):
                dots.append('v_dot2c_f32_bf16 v%d, s53, v%d' % (4 + u, base + 4 * u + q))
                dots.append('v_dot2c_f32_bf16 v%d, v%d, v%d' % (6 + u, base + 4 * u + q, base + 4 * u + q))
        fin = []
        if s == 15:
            fin = [
                'v_permlane32_swap_b32 v4, v5', 'v_permlane32_swap_b32 v6, v7',
                'v_add_f32 v4, v4, v5', 'v_add_f32 v6, v6, v7',
                'v_mov_b32 v5, v4', 'v_mov_b32 v7, v6',
                'v_lshrrev_b32 v2, 5, v0', 'v_xor_b32 v2, s52, v2',
                'v_permlane16_swap_b32 v4, v5', 'v_permlane16_swap_b32 v6, v7',
                'v_add_f32 v4, v4, v5', 'v_add_f32 v6, v6, v7',
                'v_mul_f32 v4, %s, v4' % f2u(1 / 512), 'v_mul_f32 v6, %s, v6' % f2u(1 / 512),
                'v_fma_f32 v6, -v4, v4, v6', 'v_max_f32 v6, 0, v6',
                'v_add_f32 v6, %s, v6' % f2u(1e-5), 'v_rsq_f32 v6, v6',
                'v_and_b32 v3, 15, v0', 'v_lshlrev_b32 v3, 3, v3',
                'v_mul_f32 v7, -v4, v6',
                'v_lshl_add_u32 v2, v2, 7, v3', 'v_add_u32 v2, %d, v2' % K3_ST,
                'ds_write_b64 v2, v[6:7]',
            ]
        extra = dots + fin
        n = 0
        for u in range(8):
            for c in range(3):
                acc = vr(ACC + 12 * u + 4 * c, 4)
                a('v_mfma_f32_16x16x32_bf16 %s, %s, %s, %s' % (acc, ar(12 * s + 4 * c, 4), vr(base + 4 * u, 4), acc if s else '0'))
                n += 1
                if queue and n % 3 != 0:
                    a(queue.pop(0))
                if n >= 4 or s == 15:
                    for _ in range(2 if s == 15 else 1):
                        if extra:
                            a(extra.pop(0))
        assert not queue and not extra
    k.stamp(3)
    a('s_lshl_b32 s54, s52, 7')
    a('v_add_u32 v3, %d, v3' % K3_ST)
    a('s_waitcnt lgkmcnt(0)')
    a('s_barrier')
    SB = 112
    for u in range(8):
        a('s_xor_b32 s55, s54, %d' % (u * 128))
        a('v_add_u32 v2, s55, v3')
        a('ds_read_b64 %s, v2' % vr(SB + 2 * u, 2))
    a('v_lshrrev_b32 v4, 4, v0')
    a('v_xor_b32 v4, s52, v4')
    a('v_xor_b32 v5, 4, v4')
    a('v_and_b32 v6, 15, v0')
    a('v_lshlrev_b32 v6, 4, v6')
    a('s_mov_b32 s55, %d' % H_STRIDE)
    a('v_mad_u32_u24 v4, v4, s55, v6')
    a('v_mad_u32_u24 v5, v5, s55, v6')
    a('s_mul_i32 s55, s42, %d' % (8 * H_STRIDE))
    a('s_lshl_b32 s56, s45, 8')
    a('s_add_u32 s55, s55, s56')
    a('s_add_u32 s55, s55, %d' % HH)
    for u in range(8):
        a('v_mul_f32 v%d, %s, v%d' % (128 + 2 * u, f2u(-LOG2E), SB + 2 * u))
    k.stamp(4)
    T = 144
    for c in range(3):
        if c or True:
            a('s_add_u32 s56, s45, %d' % c)
            a('s_cmp_ge_u32 s56, 172')
            a('s_cbranch_scc1 k3_done')
        for G in range(2):
            HO = 176 + 4 * (2 * c + G)
            us = range(4 * G, 4 * G + 4)
            for u in us:
                t = T + 4 * (u & 3)
                st = vr(SB + 2 * u, 2)
                a('v_pk_fma_f32 %s, %s, %s, %s op_sel:[1,0,0] op_sel_hi:[1,1,1]' % (vr(t, 2), st, vr(CS + 4 * c, 2), vr(BI + 4 * c, 2)))
                a('v_pk_fma_f32 %s, %s, %s, %s op_sel:[1,0,0] op_sel_hi:[1,1,1]' % (vr(t + 2, 2), st, vr(CS + 4 * c + 2, 2), vr(BI + 4 * c + 2, 2)))
            for u in us:
                t = T + 4 * (u & 3)
                acc = ACC + 12 * u + 4 * c
                a('v_pk_fma_f32 %s, %s, %s, %s op_sel_hi:[1,0,1]' % (vr(t, 2), vr(acc, 2), vr(128 + 2 * u, 2), vr(t, 2)))
            for u in us:
                t = T + 4 * (u & 3)
                acc = ACC + 12 * u + 4 * c
                a('v_exp_f32 v%d, v%d' % (t, t))
                a('v_exp_f32 v%d, v%d' % (t + 1, t + 1))
                a('v_pk_fma_f32 %s, %s, %s, %s op_sel_hi:[1,0,1]' % (vr(t + 2, 2), vr(acc + 2, 2), vr(SB + 2 * u, 2), vr(t + 2, 2)))
            for u in us:
                t = T + 4 * (u & 3)
                a('v_pk_add_f32 %s, %s, 1.0 op_sel_hi:[1,0]' % (vr(t, 2), vr(t, 2)))
            for u in us:
                t = T + 4 * (u & 3)
                a('v_rcp_f32 v%d, v%d' % (t, t))
                a('v_rcp_f32 v%d, v%d' % (t + 1, t + 1))
            for u in us:
                t = T + 4 * (u & 3)
                a('v_pk_mul_f32 %s, %s, %s' % (vr(t, 2), vr(t, 2), vr(t + 2, 2)))
            for u in us:
                t = T + 4 * (u & 3)
                a('v_cvt_pk_bf16_f32 v%d, v%d, v%d' % (HO + (u & 3), t, t + 1))
            a('v_permlane32_swap_b32 v%d, v%d' % (HO, HO + 2))
            a('v_permlane32_swap_b32 v%d, v%d' % (HO + 1, HO + 3))
            a('v_permlane16_swap_b32 v%d, v%d' % (HO, HO + 1))
            a('v_permlane16_swap_b32 v%d, v%d' % (HO + 2, HO + 3))
            a('buffer_store_dwordx4 %s, v%d, %s, s55 offen offset:%d' % (vr(HO, 4), 4 + G, WS, 256 * c))
    a.label('k3_done')
    k.end('s3', WS)
    a.label('k3_exit')
    a('s_endpgm')
    return dict(name='k3_kernel', grid=256, block=256, lds=K3_LDS, vgpr=224 + 192, accum=224)


K4_X = 131072
K4_LDS = K4_X + 8192


def gen_k4(a):
    k = K(a, 3)
    WS = 's[36:39]'
    OUT = 's[32:35]'
    a.label('k4_kernel')
    a('s_cmp_ge_u32 s2, 256')
    a('s_cbranch_scc1 k4_exit')
    k.begin()
    a('s_load_dwordx2 s[36:37], s[0:1], 120')
    a('s_load_dwordx2 s[32:33], s[0:1], 104')
    a('v_lshrrev_b32 v1, 6, v0')
    a('v_and_b32 v0, 63, v0')
    a('v_readfirstlane_b32 s3, v1')
    a('s_mov_b32 s38, %d' % WS_SRD)
    a('s_mov_b32 s39, 0x20000')
    a('s_mov_b32 s34, %d' % (2048 * 512 * 2))
    a('s_mov_b32 s35, 0x20000')
    a('s_and_b32 s40, s2, 7')
    a('s_lshr_b32 s41, s2, 3')
    a('s_and_b32 s42, s40, 1')
    a('s_lshl_b32 s42, s42, 4')
    a('s_and_b32 s43, s40, 2')
    a('s_lshl_b32 s43, s43, 2')
    a('s_add_u32 s42, s42, s43')
    a('s_and_b32 s43, s41, 7')
    a('s_add_u32 s42, s42, s43')
    a('s_and_b32 s43, s40, 4')
    a('s_lshr_b32 s44, s41, 3')
    a('s_add_u32 s43, s43, s44')
    a('v_lshlrev_b32 v1, 4, v0')
    a('s_lshl_b32 s45, s42, 2')
    a('s_add_u32 s45, s45, s3')
    a('s_mul_i32 s46, s45, %d' % H_STRIDE)
    a('s_add_u32 s46, s46, %d' % HH)
    a('s_mul_i32 s47, s43, %d' % WD_STRIDE)
    a('s_lshl_b32 s48, s3, 10')
    a('s_add_u32 s47, s47, s48')
    a('s_add_u32 s47, s47, %d' % WD)
    a('s_mov_b32 m0, s48')
    a('s_waitcnt lgkmcnt(0)')
    NS = 43

    def issue(s):
        if s == 32:
            a('s_mov_b32 m0, s48')
        a('buffer_load_dwordx4 v1, %s, s47 offen lds' % WS, tag='w%d' % s)
        a('buffer_load_dwordx4 %s, v1, %s, s46 offen offset:%d' % (ar(4 * s, 4), WS, 1024 * (s & 3)))
        if s < NS - 1:
            a('s_add_u32 s47, s47, 4096')
            a('s_add_u32 m0, m0, 4096')
            if s & 3 == 3:
                a('s_add_u32 s46, s46, 4096')
    for s in range(4):
        issue(s)
    a('s_mov_b32 s49, m0')
    a('v_lshrrev_b32 v2, 3, v0')
    a('v_and_b32 v3, 7, v0')
    a('v_lshlrev_b32 v3, 4, v3')
    a('v_lshl_add_u32 v3, v2, 8, v3')
    a('v_lshrrev_b32 v2, 2, v2')
    a('s_and_b32 s50, s42, 1')
    a('v_xor_b32 v2, s50, v2')
    a('v_lshl_add_u32 v3, v2, 7, v3')
    a('s_lshr_b32 s50, s42, 1')
    a('s_lshl_b32 s50, s50, 17')
    a('s_lshl_b32 s51, s43, 14')
    a('s_add_u32 s50, s50, s51')
    a('s_lshl_b32 s51, s3, 12')
    a('s_add_u32 s50, s50, s51')
    a('s_add_u32 s50, s50, %d' % X1T)
    a('s_lshl_b32 s51, s3, 11')
    a('s_add_u32 m0, s51, %d' % K4_X)
    a('s_add_u32 s52, s50, 1024')
    a('buffer_load_dwordx4 v3, %s, s50 offen lds' % WS, tag='x')
    a('buffer_load_dwordx4 v3, %s, s52 offen offset:1024 lds' % WS, tag='x')
    a('s_mov_b32 m0, s49')
    a('v_and_b32 v4, 15, v0')
    a('v_lshlrev_b32 v5, 4, v4')
    a('s_lshl_b32 s51, s43, 8')
    a('s_add_u32 s51, s51, %d' % (MOD + 5 * 2048))
    a('buffer_load_dwordx4 v[8:11], v5, %s, s51 offen' % WS)
    for s in range(4, 28):
        issue(s)
    a('v_lshrrev_b32 v6, 4, v0')
    a('v_lshlrev_b32 v7, 9, v4')
    a('v_lshl_add_u32 v7, v6, 3, v7')
    a('v_add_u32 v7, %d, v7' % K4_X)
    a('v_add_u32 v2, 0x10000, v1')
    a('v_lshlrev_b32 v5, 3, v4')
    a('v_lshl_add_u32 v5, v6, 12, v5')
    a('s_lshl_b32 s51, s45, 14')
    a('s_lshl_b32 s52, s43, 7')
    a('s_add_u32 s51, s51, s52')
    k.stamp(1)
    ACC = 16
    XR = 32
    WB = 64
    groups = [list(range(g, min(g + 4, NS))) for g in range(0, NS, 4)]
    for j, grp in enumerate(groups):
        a.wait_tag(*(['w%d' % s for s in grp] + (['x'] if j == 1 else [])))
        a('s_barrier')
        if j == 0:
            k.stamp(2)
        rd = []
        for i, s in enumerate(grp):
            slot = s & 31
            for c in range(4):
                rd.append('ds_read_b128 %s, v%d offset:%d' % (vr(WB + 16 * i + 4 * c, 4), 1 if slot < 16 else 2, (slot & 15) * 4096 + 1024 * c))
        for r in rd[:8]:
            a(r)
        rd = rd[8:]
        if j + 7 < len(groups):
            for s in groups[j + 7]:
                issue(s)
        if j == 1:
            for c in range(4):
                a('s_xor_b32 s52, s3, %d' % c)
                a('s_lshl_b32 s52, s52, 5')
                a('v_add_u32 v3, s52, v7')
                a('ds_read_b64 %s, v3 offset:%d' % (vr(XR + 2 * c, 2), 128 * c))
        for i, s in enumerate(grp):
            for c in range(4):
                acc = vr(ACC + 4 * c, 4)
                a('v_mfma_f32_16x16x32_bf16 %s, %s, %s, %s' % (acc, ar(4 * s, 4), vr(WB + 16 * i + 4 * c, 4), acc if s else '0'))
                if rd:
                    a(rd.pop(0))
        if j == 2:
            for c in range(4):
                for e in range(2):
                    a('v_lshlrev_b32 v%d, 16, v%d' % (40 + 4 * c + 2 * e, XR + 2 * c + e))
                    a('v_and_b32 v%d, 0xffff0000, v%d' % (41 + 4 * c + 2 * e, XR + 2 * c + e))
    k.stamp(3)
    for c in range(4):
        for e in (0, 2):
            sel = c & 1
            a('v_pk_fma_f32 %s, %s, %s, %s op_sel:[%d,0,0] op_sel_hi:[%d,1,1]' % (vr(40 + 4 * c + e, 2), vr(8 + (c & 2), 2), vr(ACC + 4 * c + e, 2), vr(40 + 4 * c + e, 2), sel, sel))
    for r in range(4):
        a('v_cvt_pk_bf16_f32 v%d, v%d, v%d' % (XR + 2 * r, 40 + r, 44 + r))
        a('v_cvt_pk_bf16_f32 v%d, v%d, v%d' % (XR + 2 * r + 1, 48 + r, 52 + r))
        a('buffer_store_dwordx2 %s, v5, %s, s51 offen offset:%d' % (vr(XR + 2 * r, 2), OUT, 1024 * r))
    k.end('s3', WS)
    a.label('k4_exit')
    a('s_endpgm')
    return dict(name='k4_kernel', grid=256, block=256, lds=K4_LDS, vgpr=128 + 172, accum=128)


def gen_report(a, nk):
    a.label('rep_kernel')
    a('s_cmp_ge_u32 s2, 1')
    a('s_cbranch_scc1 rep_exit')
    a('s_load_dwordx4 s[4:7], s[0:1], 112')
    a('v_lshlrev_b32 v1, 2, v0')
    a('v_and_b32 v2, 1, v0')
    a('v_sub_u32 v2, v2, 1')
    a('ds_write_b32 v1, v2')
    a('v_and_b32 v3, 0xfb, v0')
    a('v_lshlrev_b32 v3, 10, v3')
    a('v_add_u32 v3, %d, v3' % STAMPS)
    a('v_mov_b32 v4, 0')
    a('s_waitcnt lgkmcnt(0)')
    a('s_barrier')
    for kk in range(nk):
        a('global_load_dword v5, v3, s[6:7]')
        a('global_load_dword v6, v3, s[6:7] offset:28')
        a('ds_min_u32 v4, v5 offset:%d' % (16 * kk))
        a('ds_max_u32 v4, v5 offset:%d' % (16 * kk + 4))
        a('ds_min_u32 v4, v6 offset:%d' % (16 * kk + 8))
        a('ds_max_u32 v4, v6 offset:%d' % (16 * kk + 12))
        a('v_add_u32 v3, %d, v3' % (256 * 16 * 64))
    a('s_waitcnt lgkmcnt(0)')
    a('s_barrier')
    a('ds_read_b32 v5, v1')
    a('ds_read_b32 v6, v4')
    a('v_cmp_gt_u32 vcc, 16, v0')
    a('v_sub_u32 v5, v5, v6')
    a('s_and_b64 exec, exec, vcc')
    a('s_cbranch_execz rep_exit')
    a('global_store_dword v1, v5, s[4:5]')
    if OPT.get('spin'):
        a('v_readlane_b32 s10, v5, %d' % int(OPT['spin']))
        a('v_readfirstlane_b32 s11, v6')
        a('s_min_u32 s10, s10, 10000')
        a('s_mul_i32 s10, s10, 10')
        a('s_add_u32 s10, s10, 10000')
        a.label('rep_spin')
        a('s_memrealtime s[12:13]')
        a('s_waitcnt lgkmcnt(0)')
        a('s_sub_u32 s12, s12, s11')
        a('s_cmp_lt_u32 s12, s10')
        a('s_cbranch_scc1 rep_spin')
    a.label('rep_exit')
    a('s_endpgm')
    return dict(name='rep_kernel', grid=1, block=256, lds=1024, vgpr=16, accum=16)


def build(diag=False, opt=None):
    global DIAG, OPT
    DIAG = diag
    OPT = opt or {}
    ref = open('cdna_kernels/%s.s.ref' % NAME).read().split('\n')
    head = [l for l in ref if l.startswith(';') and '@launch' not in l and 'Override launch' not in l and 'grid=ceil' not in l
            and not l.startswith('    ')]
    a = Asm()
    infos = []
    for g in (gen_k1, gen_k2, gen_k3, gen_k4):
        a.raw('.p2align 8')
        infos.append(g(a))
    a.raw('code_end:')
    if OPT.get('report'):
        a.raw('.p2align 8')
        infos.append(gen_report(a, len(infos)))
    out = head
    for i in infos:
        out.append('; @launch kernel=%s grid=(%d,1,1) block=(%d,1,1) lds=%d' % (i['name'], i['grid'], i['block'], i['lds']))
    out.append('.amdgcn_target "amdgcn-amd-amdhsa--gfx950"')
    out.append('.text')
    for i in infos:
        out.append('.globl %s' % i['name'])
        out.append('.type %s,@function' % i['name'])
    out.append(a.text())
    out.append('.section .rodata,"a"')
    for i in infos:
        out.append('.p2align 6')
        out.append('.amdhsa_kernel %s' % i['name'])
        out.append('  .amdhsa_next_free_vgpr %d' % i['vgpr'])
        out.append('  .amdhsa_next_free_sgpr 102')
        out.append('  .amdhsa_accum_offset %d' % i['accum'])
        out.append('  .amdhsa_group_segment_fixed_size 0')
        out.append('  .amdhsa_kernarg_size 128')
        out.append('  .amdhsa_user_sgpr_count 2')
        out.append('  .amdhsa_user_sgpr_kernarg_segment_ptr 1')
        out.append('  .amdhsa_system_sgpr_workgroup_id_x 1')
        out.append('.end_amdhsa_kernel')
    return '\n'.join(out) + '\n'


if __name__ == '__main__':
    import argparse
    ap = argparse.ArgumentParser()
    ap.add_argument('-o', default='cdna_kernels/%s.s' % NAME)
    ap.add_argument('--diag', action='store_true')
    ap.add_argument('--opt', action='append', default=[])
    args = ap.parse_args()
    opt = dict(o.split('=', 1) for o in args.opt)
    open(args.o, 'w').write(build(args.diag, opt))
```
